```python
import torch

def _softmax(x, axis=-1):
    return torch.softmax(x, dim=axis)
def _gelu(x):
    return torch.nn.functional.gelu(x, approximate="tanh")
def _silu(x):
    return torch.nn.functional.silu(x)
def _sigmoid(x):
    return torch.sigmoid(x)
def _layernorm(x, axis=-1, eps=1e-5):
    m = x.mean(dim=axis, keepdim=True)
    v = x.var(dim=axis, keepdim=True, unbiased=False)
    return (x - m) / torch.sqrt(v + eps)
def _scatter_add(tgt, idx, src, axis=0):
    return tgt.clone().index_add_(axis, idx, src)
def _segment_sum(src, seg, n):
    out = torch.zeros((n,) + src.shape[1:], dtype=src.dtype)
    return out.index_add_(0, seg, src)
def _pad(x, pw):
    flat = tuple(v for pair in reversed(pw) for v in pair)
    return torch.nn.functional.pad(x, flat)

kernel_name = 'parallel_sum__ssm_conv_s4d__glu_gated_geglu__prompt'

def setup_inputs():

    _w = (lambda a: (lambda t: t.to(torch.bfloat16) if t.is_floating_point() else t)(torch.as_tensor(a)))
    def _A_setup():
        Bsz, L, D, N = 1, 2048, 512, 128
        return {
            "u": _w((lambda *s: torch.randn(*s, dtype=torch.bfloat16) * 0.05)(Bsz, L, D)),
            "log_A_real": _w((lambda *s: torch.randn(*s, dtype=torch.bfloat16) * 6.4)(D, N) * 0.5),
            "A_imag": _w((lambda *s: torch.randn(*s, dtype=torch.bfloat16) * 0.05)(D, N) * 3.14),
            "C_real": _w((lambda *s: torch.randn(*s, dtype=torch.bfloat16) * 0.05)(D, N) / N ** 0.5),
            "C_imag": _w((lambda *s: torch.randn(*s, dtype=torch.bfloat16) * 0.05)(D, N) / N ** 0.5),
            "log_dt": _w((lambda *s: torch.randn(*s, dtype=torch.bfloat16) * 0.05)(D) * 0.5 - 4.0),
            "D_skip": _w((lambda *s: torch.randn(*s, dtype=torch.bfloat16) * 0.05)(D)),
        }
    _A_in = _A_setup()

    def _B_setup():
        B, S, Dm, Df = 1, 2048, 512, 1792
        return {
            "x": _w((lambda *s: torch.randn(*s, dtype=torch.bfloat16) * 0.05)(B, S, Dm)),
            "w_gate": _w((lambda *s: torch.randn(*s, dtype=torch.bfloat16) * 0.4)(Dm, Df) * (Dm ** -0.5)),
            "w_up": _w((lambda *s: torch.randn(*s, dtype=torch.bfloat16) * 0.4)(Dm, Df) * (Dm ** -0.5)),
            "w_down": _w((lambda *s: torch.randn(*s, dtype=torch.bfloat16) * 0.4)(Df, Dm) * (Df ** -0.5)),
        }
    _B_in = _B_setup()

    return {
        "A_u": _A_in["u"],
        "A_log_A_real": _A_in["log_A_real"],
        "A_A_imag": _A_in["A_imag"],
        "A_C_real": _A_in["C_real"],
        "A_C_imag": _A_in["C_imag"],
        "A_log_dt": _A_in["log_dt"],
        "A_D_skip": _A_in["D_skip"],
        "B_x": _B_in["x"],
        "B_w_gate": _B_in["w_gate"],
        "B_w_up": _B_in["w_up"],
        "B_w_down": _B_in["w_down"],
    }

def reference(A_u, A_log_A_real, A_A_imag, A_C_real, A_C_imag, A_log_dt, A_D_skip, B_x, B_w_gate, B_w_up, B_w_down):
    def _A_ref(u, log_A_real, A_imag, C_real, C_imag, log_dt, D_skip):
        L = u.shape[1]
        dt = torch.exp(log_dt)
        A = -torch.exp(log_A_real) + 1j * A_imag
        C = (C_real + 1j * C_imag) * dt[:, None]
        pos = (lambda x, dt: x.to(dt))(torch.arange(L), log_dt.dtype)
        P = torch.exp((A * dt[:, None])[:, :, None] * pos[None, None, :])
        K = 2.0 * torch.einsum("dn,dnl->dl", C, P).real
        L2 = 2 * L
        u_t = (lambda x, *d: x.permute(*d))(u, 0, 2, 1)
        Kf = (lambda x, *a, **k: torch.fft.rfft(x.float(), *a, **k))(K, L2)
        Uf = (lambda x, *a, **k: torch.fft.rfft(x.float(), *a, **k))(u_t, L2)
        y = (lambda x, *a, **k: torch.fft.irfft(x, *a, **k).to(torch.bfloat16))(Uf * Kf[None, :, :], L2)[:, :, :L]
        y = (lambda x, *d: x.permute(*d))(y, 0, 2, 1)
        return y + u * D_skip[None, None, :]

    def _B_ref(x, w_gate, w_up, w_down):
        g = torch.einsum("bsd,df->bsf", x, w_gate)
        u = torch.einsum("bsd,df->bsf", x, w_up)
        h = _gelu(g) * u
        return torch.einsum("bsf,fd->bsd", h, w_down)

    x = A_u
    xn = _layernorm(x, axis=-1)
    return x + _A_ref(xn, A_log_A_real, A_A_imag, A_C_real, A_C_imag, A_log_dt, A_D_skip) + _B_ref(xn, B_w_gate, B_w_up, B_w_down)
```

```python
import re

TRANS = ('v_exp_f32', 'v_log_f32', 'v_rcp_f32', 'v_rsq_f32', 'v_sqrt_f32', 'v_sin_f32', 'v_cos_f32',
         'v_rcp_iflag_f32')

def mfma_info(op):
    if not op.startswith('v_mfma'):
        return None
    if op.endswith('_f32') and '_f32_' in op and op.count('f32') == 2:
        cls = 'SGEMM'
        if '32x32x2' in op or '32x32x1_2b' in op: p = 16
        elif '16x16x4' in op or '16x16x1_4b' in op: p = 8
        else: p = 2
        return cls, p
    if '32x32' in op: return 'XDL', 8
    return 'XDL', 4

REG_RE = re.compile(r'^(v|a|s)(\d+)$')
RNG_RE = re.compile(r'^(v|a|s)\[(\d+):(\d+)\]$')

def regs_of(tok):
    tok = tok.strip()
    if tok.startswith('-'): tok = tok[1:]
    if tok.startswith('|') and tok.endswith('|'): tok = tok[1:-1]
    m = REG_RE.match(tok)
    if m: return [(m.group(1), int(m.group(2)))]
    m = RNG_RE.match(tok)
    if m: return [(m.group(1), i) for i in range(int(m.group(2)), int(m.group(3)) + 1)]
    if tok == 'vcc': return [('s', 'vcc')]
    if tok == 'exec': return [('s', 'exec')]
    if tok == 'm0': return [('s', 'm0')]
    return []

class Ins:
    __slots__ = ('text', 'op', 'dst', 'src', 'kind', 'states', 'label', 'target', 'mf', 'srcA', 'srcB', 'srcC', 'dpp', 'wide', 'ldsdma')
    def __init__(self, text):
        self.text = text
        self.label = None
        self.target = None
        self.dst = set(); self.src = set()
        self.mf = None; self.srcA = set(); self.srcB = set(); self.srcC = set()
        self.dpp = False; self.wide = set(); self.ldsdma = False
        self.states = 1
        t = text.split(';')[0].strip()
        if t.endswith(':'):
            self.label = t[:-1]; self.kind = 'label'; self.op = ''; self.states = 0
            return
        parts = t.split(None, 1)
        op = parts[0]
        for suf in ('_e32', '_e64', '_dpp', '_sdwa'):
            if op.endswith(suf):
                if suf == '_dpp': self.dpp = True
                op = op[:-len(suf)]
        self.op = op
        rest = parts[1] if len(parts) > 1 else ''
        rest = re.sub(r'\b(op_sel_hi|op_sel|neg_lo|neg_hi|quad_perm):\[[^\]]*\]', lambda m: 'quad_perm' if m.group(1) == 'quad_perm' else '', rest)
        ops = [o.strip() for o in rest.split(',')] if rest else []
        if ops:
            last = ops[-1].split()
            if last:
                ops[-1] = last[0]
                mods = last[1:]
            else:
                mods = []
        else:
            mods = []
        if any(m.startswith(('row_', 'quad_perm', 'wave_')) for m in mods): self.dpp = True
        R = [regs_of(o) for o in ops]
        def S(i): return set(R[i]) if i < len(R) else set()
        if op == 's_nop':
            self.kind = 'snop'; self.states = int(ops[0], 0) + 1
        elif op.startswith('v_mfma'):
            self.kind = 'mfma'; self.mf = mfma_info(op)
            self.dst = S(0); self.srcA = S(1); self.srcB = S(2); self.srcC = S(3)
            self.src = self.srcA | self.srcB | self.srcC
        elif op.startswith('v_'):
            self.kind = 'valu'
            if op.startswith('v_cmpx'):
                self.dst = S(0) | {('s', 'exec')}; self.src = set().union(*[S(i) for i in range(1, len(R))])
            elif op.startswith(('v_add_co', 'v_addc_co', 'v_sub_co', 'v_subb_co', 'v_subrev_co', 'v_div_scale')):
                self.dst = S(0) | S(1); self.src = set().union(*[S(i) for i in range(2, len(R))])
            elif op.startswith('v_permlane') and 'swap' in op:
                self.dst = S(0) | S(1); self.src = S(0) | S(1)
            else:
                self.dst = S(0); self.src = set().union(*[S(i) for i in range(1, len(R))]) if len(R) > 1 else set()
                if op.startswith(('v_fmac', 'v_mac', 'v_pk_fmac')): self.src |= S(0)
                if op.startswith('v_cndmask') and len(R) == 3: self.src |= {('s', 'vcc')}
                if op.startswith('v_div_fmas'): self.src |= {('s', 'vcc')}
                if op.startswith('v_writelane'): self.src |= S(0)
        elif op.startswith('ds_'):
            self.kind = 'ds'
            if op.startswith(('ds_read', 'ds_bpermute', 'ds_permute', 'ds_swizzle')):
                self.dst = S(0); self.src = set().union(*[S(i) for i in range(1, len(R))])
            else:
                self.src = set().union(*[S(i) for i in range(len(R))])
        elif op.startswith(('global_', 'buffer_', 'flat_')):
            self.kind = 'vmem'
            if 'load' in op and ('lds' in op or 'lds' in mods):
                self.ldsdma = True
                self.src = set().union(*[S(i) for i in range(len(R))]) | {('s', 'm0')}
            elif 'load' in op:
                self.dst = S(0); self.src = set().union(*[S(i) for i in range(1, len(R))])
            else:
                self.src = set().union(*[S(i) for i in range(len(R))])
                if op.endswith(('x3', 'x4')):
                    self.wide = S(1) if op.startswith(('global_', 'flat_')) else S(0)
        elif op.startswith('s_'):
            self.kind = 'salu'
            if op.startswith(('s_branch', 's_cbranch')):
                self.kind = 'branch'; self.target = ops[0]
            elif op.startswith(('s_cmp', 's_waitcnt', 's_barrier', 's_endpgm', 's_setprio', 's_sleep', 's_bitcmp')):
                self.src = set().union(*[S(i) for i in range(len(R))]) if R else set()
            else:
                self.dst = S(0); self.src = set().union(*[S(i) for i in range(1, len(R))]) if len(R) > 1 else set()
                if 'saveexec' in op: self.dst |= {('s', 'exec')}
        else:
            raise ValueError('unknown instruction: ' + text)

XDL_AB = {2: 5, 4: 8, 8: 12, 16: 20}
XDL_CP = {2: 4, 4: 6, 8: 10, 16: 18}
XDL_CS = {2: 3, 4: 6, 8: 10, 16: 18}
SG_AB = {2: 4, 4: 6, 8: 10, 16: 18}
SG_CP = {2: 2, 4: 4, 8: 8, 16: 16}
XDL_WAR = {2: 1, 4: 3, 8: 7, 16: 15}

def vg(s): return {r for r in s if r[0] in ('v', 'a')}
def sg(s): return {r for r in s if r[0] == 's'}

def required(J, I):
    req = 0
    if J.kind == 'valu':
        wv = vg(J.dst); ws = sg(J.dst)
        if I.kind == 'mfma' and (wv & I.src): req = max(req, 2)
        if J.op in TRANS and I.kind == 'valu' and I.op not in TRANS and (wv & I.src): req = max(req, 1)
        if ws:
            if I.kind == 'valu' and (ws & sg(I.src)):
                req = max(req, 2)
                if I.op.startswith(('v_readlane', 'v_writelane', 'v_div_fmas')): req = max(req, 4)
            if I.kind == 'vmem' and (ws & sg(I.src)): req = max(req, 5)
            if ('s', 'exec') in ws:
                if I.kind == 'mfma': req = max(req, 4)
                if I.kind == 'valu' and I.dpp: req = max(req, 5)
                if I.op.startswith(('v_readlane', 'v_readfirstlane', 'v_writelane', 'v_permlane')): req = max(req, 4)
        if I.kind == 'valu' and (wv & I.src):
            if I.dpp: req = max(req, 2)
            if I.op.startswith(('v_readlane', 'v_readfirstlane')): req = max(req, 1)
            if I.op.startswith('v_permlane'): req = max(req, 2)
    elif J.kind == 'mfma':
        cls, p = J.mf
        D = J.dst
        if I.kind == 'mfma':
            if D & I.srcC:
                if I.srcC == D and I.mf == J.mf and I.op == J.op: req = max(req, 2 if p == 2 else 0)
                elif cls == 'XDL': req = max(req, XDL_CP[p] if I.mf[0] == 'XDL' else XDL_CS[p])
                else: req = max(req, SG_CP[p] if I.mf[0] != 'XDL' else 0)
            if D & (I.srcA | I.srcB): req = max(req, XDL_AB[p] if cls == 'XDL' else SG_AB[p])
            if (D & I.dst) and not (I.srcC == D):
                req = max(req, XDL_AB[p] if cls == 'XDL' else SG_AB[p])
        elif I.kind in ('valu', 'vmem', 'ds'):
            if D & (I.src | I.dst): req = max(req, XDL_AB[p] if cls == 'XDL' else SG_AB[p])
        if cls == 'XDL' and I.kind == 'valu' and (J.srcC & I.dst): req = max(req, XDL_WAR[p])
    elif J.kind == 'vmem':
        if J.wide:
            if I.kind == 'valu' and (J.wide & I.dst): req = max(req, 2)
            elif I.kind in ('vmem', 'ds', 'mfma') and (J.wide & I.dst): req = max(req, 1)
    elif J.kind == 'salu':
        if ('s', 'm0') in J.dst and (I.ldsdma or 'addtid' in I.op): req = max(req, 1)
    return req

class Kernel:
    def __init__(self, name):
        self.name = name
        self.lines = []
    def __call__(self, text):
        for l in text.strip().split('\n'):
            l = l.strip()
            if not l or l.startswith(';'): continue
            self.lines.append(l)
    def finalize(self):
        ins = [Ins(l) for l in self.lines]
        MAXW = 21
        changed = True
        while changed:
            changed = False
            labels = {x.label: i for i, x in enumerate(ins) if x.label}
            branch_to = {}
            for i, x in enumerate(ins):
                if x.kind == 'branch': branch_to.setdefault(x.target, []).append(i)
            def preds(i):
                out = []
                if i > 0 and not (ins[i-1].op in ('s_branch', 's_endpgm')): out.append(i - 1)
                if ins[i].label: out += branch_to.get(ins[i].label, [])
                return out
            i = 0
            while i < len(ins):
                I = ins[i]
                if I.kind in ('label', 'snop', 'branch') or (I.kind == 'salu'):
                    i += 1; continue
                need = 0
                stack = [(p, 0) for p in preds(i)]
                seen = {}
                while stack:
                    j, d = stack.pop()
                    if d >= MAXW: continue
                    if seen.get(j, 99) <= d: continue
                    seen[j] = d
                    J = ins[j]
                    if J.kind not in ('label',):
                        r = required(J, I)
                        if r > d: need = max(need, r - d)
                    nd = d + J.states
                    for p in preds(j): stack.append((p, nd))
                if need > 0:
                    n = need
                    pos = i
                    while n > 0:
                        k = min(n, 16)
                        ins.insert(pos, Ins('s_nop %d' % (k - 1)))
                        n -= k
                    changed = True
                    break
                i += 1
        return [x.text for x in ins]

def kernel_text(k, vgpr, accum=None, sgpr=100, agprs=0, wgy=False):
    body = k.finalize()
    out = []
    out.append('.globl %s' % k.name)
    out.append('.p2align 8')
    out.append('.type %s,@function' % k.name)
    out.append('%s:' % k.name)
    for l in body:
        out.append(l if l.endswith(':') else '    ' + l)
    return '\n'.join(out)

def kd_text(name, vgpr, agprs=0, sgpr=100):
    acc = (vgpr + 3) // 4 * 4
    nfv = acc + agprs
    return '\n'.join([
        '.amdhsa_kernel %s' % name,
        '  .amdhsa_next_free_vgpr %d' % nfv,
        '  .amdhsa_next_free_sgpr %d' % sgpr,
        '  .amdhsa_accum_offset %d' % acc,
        '  .amdhsa_group_segment_fixed_size 0',
        '  .amdhsa_kernarg_size 112',
        '  .amdhsa_user_sgpr_count 2',
        '  .amdhsa_user_sgpr_kernarg_segment_ptr 1',
        '  .amdhsa_system_sgpr_workgroup_id_x 1',
        '.end_amdhsa_kernel'])
```

```python
from asmlib import *

WS_XN = 0
WS_XNT = 0x200000
WS_KHI = 0x400000
WS_KLO = 0x700000
WS_AOT = 0xA00000
WS_H = 0xC00000
WS_WGU = 0x1400000
WS_WDF = 0x1800000
NLN = 64
NRL = 168
KROW = 4160
LOG2E = 0x3fb8aa3b
INV2PI = 0x3e22f983

def build_k1(name):
    k = Kernel(name)
    k('''
    s_load_dwordx2 s[4:5], s[0:1], 0
    s_load_dwordx2 s[6:7], s[0:1], 104
    s_cmp_ge_u32 s2, 64
    s_cbranch_scc1 L_k1_relay
    v_and_b32 v1, 63, v0
    v_lshrrev_b32 v2, 6, v0
    v_and_b32 v3, 15, v1
    v_lshrrev_b32 v4, 4, v1
    v_lshlrev_b32 v5, 3, v2
    v_add_u32 v5, v5, v4
    s_lshl_b32 s8, s2, 15
    v_lshlrev_b32 v6, 10, v5
    v_lshl_add_u32 v6, v3, 6, v6
    v_add_u32 v6, s8, v6
    v_add_u32 v8, 0x1000, v6
    v_mul_u32_u24 v7, 0x440, v5
    v_lshl_add_u32 v7, v3, 6, v7
    s_waitcnt lgkmcnt(0)
    ''')
    for p in range(2):
        for c in range(4):
            k('global_load_dwordx4 v[%d:%d], v%d, s[4:5] offset:%d' % (16 + 16 * p + 4 * c, 19 + 16 * p + 4 * c, 6 if p == 0 else 8, 16 * c))
    for p in range(2):
        B = 16 + 16 * p
        k('s_waitcnt vmcnt(%d)' % (4 if p == 0 else 0))
        for i in range(16):
            k('v_lshlrev_b32 v%d, 16, v%d' % (48 + 2 * i, B + i))
            k('v_and_b32 v%d, 0xffff0000, v%d' % (49 + 2 * i, B + i))
        for i in range(4):
            k('v_add_f32 v%d, v%d, v%d' % (80 + i, 48 + i, 52 + i))
        for j in range(2, 8):
            for i in range(4):
                k('v_add_f32 v%d, v%d, v%d' % (80 + i, 80 + i, 48 + 4 * j + i))
        k('v_add_f32 v80, v80, v81')
        k('v_add_f32 v82, v82, v83')
        k('v_add_f32 v80, v80, v82')
        src, dst = 80, 81
        for r in (8, 4, 2, 1):
            k('v_add_f32_dpp v%d, v%d, v%d row_ror:%d row_mask:0xf bank_mask:0xf' % (dst, src, src, r))
            src, dst = dst, src
        k('v_mul_f32 v82, 0x3b000000, v%d' % src)
        for i in range(4): k('v_mov_b32 v%d, 0' % (84 + i))
        for i in range(32):
            k('v_sub_f32 v%d, v%d, v82' % (88 + (i & 3), 48 + i))
            k('v_fmac_f32 v%d, v%d, v%d' % (84 + (i & 3), 88 + (i & 3), 88 + (i & 3)))
        k('v_add_f32 v84, v84, v85')
        k('v_add_f32 v86, v86, v87')
        k('v_add_f32 v84, v84, v86')
        src, dst = 84, 85
        for r in (8, 4, 2, 1):
            k('v_add_f32_dpp v%d, v%d, v%d row_ror:%d row_mask:0xf bank_mask:0xf' % (dst, src, src, r))
            src, dst = dst, src
        k('''
        v_mul_f32 v86, 0x3b000000, v%d
        v_cvt_pk_bf16_f32 v82, v82, v86
        v_and_b32 v86, 0xffff0000, v82
        v_lshlrev_b32 v82, 16, v82
        v_add_f32 v86, 0x3727c5ac, v86
        v_cvt_pk_bf16_f32 v86, v86, v86
        v_lshlrev_b32 v86, 16, v86
        v_sqrt_f32 v86, v86
        s_nop 0
        v_cvt_pk_bf16_f32 v86, v86, v86
        v_lshlrev_b32 v86, 16, v86
        v_rcp_f32 v87, v86
        ''' % src)
        for i in range(16):
            a, b = 48 + 2 * i, 49 + 2 * i
            t = 88 + 4 * (i & 1)
            k('v_sub_f32 v%d, v%d, v82' % (a, a))
            k('v_sub_f32 v%d, v%d, v82' % (b, b))
            k('v_cvt_pk_bf16_f32 v%d, v%d, v%d' % (t, a, b))
            k('v_lshlrev_b32 v%d, 16, v%d' % (a, t))
            k('v_and_b32 v%d, 0xffff0000, v%d' % (b, t))
            k('v_mul_f32 v%d, v%d, v87' % (t, a))
            k('v_mul_f32 v%d, v%d, v87' % (t + 1, b))
            k('v_fma_f32 v%d, -v%d, v86, v%d' % (t + 2, t, a))
            k('v_fma_f32 v%d, -v%d, v86, v%d' % (t + 3, t + 1, b))
            k('v_fmac_f32 v%d, v%d, v87' % (t, t + 2))
            k('v_fmac_f32 v%d, v%d, v87' % (t + 1, t + 3))
            k('v_cvt_pk_bf16_f32 v%d, v%d, v%d' % (B + i, t, t + 1))
        for c in range(4):
            k('ds_write_b128 v7, v[%d:%d] offset:%d' % (B + 4 * c, B + 4 * c + 3, 4352 * p + 16 * c))
    k('''
    v_lshrrev_b32 v9, 2, v1
    v_and_b32 v9, 3, v9
    v_mul_u32_u24 v9, 0x440, v9
    v_and_b32 v10, 3, v1
    v_lshlrev_b32 v10, 3, v10
    v_add_u32 v9, v9, v10
    v_lshl_add_u32 v9, v4, 5, v9
    v_lshl_add_u32 v9, v2, 8, v9
    ''')
    k('''
    v_lshlrev_b32 v10, 7, v2
    v_lshl_add_u32 v10, v4, 4, v10
    v_add_u32 v10, v10, v3
    v_lshlrev_b32 v10, 12, v10
    s_lshl_b32 s8, s2, 6
    s_add_u32 s8, s8, %d
    v_add_u32 v10, s8, v10
    v_add_u32 v11, 0x40000, v10
    v_and_b32 v12, 31, v1
    v_mul_u32_u24 v12, 0x440, v12
    v_lshrrev_b32 v13, 5, v1
    v_lshl_add_u32 v12, v13, 4, v12
    v_lshl_add_u32 v12, v2, 8, v12
    s_lshr_b32 s8, s2, 2
    s_lshl_b32 s8, s8, 17
    s_and_b32 s9, s2, 3
    s_lshl_b32 s9, s9, 11
    s_add_u32 s8, s8, s9
    v_lshlrev_b32 v13, 15, v2
    v_lshl_add_u32 v13, v1, 4, v13
    v_add_u32 v13, s8, v13
    s_waitcnt lgkmcnt(0)
    s_barrier
    ''' % WS_XNT)
    for q in range(4):
        for kh in range(2):
            f = 2 * q + kh
            k('ds_read_b128 v[%d:%d], v12 offset:%d' % (48 + 4 * f, 51 + 4 * f, 64 * q + 32 * kh))
    for s in range(2):
        for kk in range(8):
            k('ds_read_b64_tr_b16 v[%d:%d], v9 offset:%d' % (16 + 16 * s + 2 * kk, 17 + 16 * s + 2 * kk, 4352 * kk + 128 * s))
    for s in range(2):
        k('s_waitcnt lgkmcnt(%d)' % (8 if s == 0 else 0))
        if s == 0:
            for q in range(4):
                if q: k('v_add_u32 v13, 0x2000, v13')
                for kh in range(2):
                    f = 2 * q + kh
                    k('global_store_dwordx4 v13, v[%d:%d], s[6:7] offset:%d' % (48 + 4 * f, 51 + 4 * f, 1024 * kh))
        for c in range(4):
            k('global_store_dwordx4 v%d, v[%d:%d], s[6:7] offset:%d' % (10 + s, 16 + 16 * s + 4 * c, 19 + 16 * s + 4 * c, 16 * c))
    k('s_endpgm')

    k('''
    L_k1_relay:
    s_sub_u32 s3, s2, 64
    s_cmp_ge_u32 s3, %d
    s_cbranch_scc1 L_k1_kgen
    s_load_dwordx4 s[8:11], s[0:1], 64
    s_load_dwordx2 s[12:13], s[0:1], 80
    v_and_b32 v1, 63, v0
    v_lshrrev_b32 v2, 6, v0
    v_readfirstlane_b32 s14, v2
    s_lshl_b32 s3, s3, 2
    s_add_u32 s3, s3, s14
    v_lshrrev_b32 v3, 4, v1
    v_and_b32 v4, 15, v1
    v_lshrrev_b32 v5, 2, v1
    v_and_b32 v5, 3, v5
    v_and_b32 v6, 3, v1
    v_and_b32 v7, 1, v3
    v_lshrrev_b32 v8, 1, v3
    v_and_b32 v9, 1, v6
    v_lshrrev_b32 v10, 1, v6
    s_waitcnt lgkmcnt(0)
    s_cmp_ge_u32 s3, 448
    s_cbranch_scc1 L_k1_relay_d
    s_cmp_ge_u32 s3, 224
    s_cselect_b32 s8, s10, s8
    s_cselect_b32 s9, s11, s9
    s_cselect_b32 s15, 1, 0
    s_cselect_b32 s16, 224, 0
    s_sub_u32 s3, s3, s16
    s_lshr_b32 s16, s3, 4
    s_and_b32 s17, s3, 15
    s_mul_i32 s18, s17, %d
    s_lshl_b32 s19, s16, 8
    s_add_u32 s18, s18, s19
    s_add_u32 s8, s8, s18
    s_addc_u32 s9, s9, 0
    s_lshl_b32 s18, s3, 1
    s_add_u32 s18, s18, s15
    s_lshl_b32 s18, s18, 13
    s_add_u32 s18, s18, 0x%x
    s_movk_i32 s19, 3584
    s_movk_i32 s20, 4096
    s_movk_i32 s21, 2048
    s_movk_i32 s22, 1024
    v_lshlrev_b32 v11, 2, v7
    v_lshl_add_u32 v11, v9, 1, v11
    v_add_u32 v11, v11, v10
    s_branch L_k1_relay_go
    L_k1_relay_d:
    s_sub_u32 s3, s3, 448
    s_lshr_b32 s16, s3, 2
    s_and_b32 s17, s3, 3
    s_lshl_b32 s18, s16, 15
    s_lshl_b32 s19, s17, 8
    s_add_u32 s18, s18, s19
    s_add_u32 s8, s12, s18
    s_addc_u32 s9, s13, 0
    s_mul_i32 s18, s17, %d
    s_lshl_b32 s19, s16, 12
    s_add_u32 s18, s18, s19
    s_add_u32 s18, s18, 0x%x
    s_movk_i32 s19, 1024
    s_mov_b32 s20, %d
    s_movk_i32 s21, 1024
    s_movk_i32 s22, 2048
    v_lshlrev_b32 v11, 2, v9
    v_lshl_add_u32 v11, v7, 1, v11
    v_add_u32 v11, v11, v10
    L_k1_relay_go:
    v_mul_lo_u32 v12, v3, s19
    v_lshl_add_u32 v12, v4, 4, v12
    s_lshl_b32 s23, s19, 2
    s_mul_i32 s24, s14, 8704
    v_mul_u32_u24 v13, 272, v3
    v_lshl_add_u32 v13, v4, 4, v13
    v_add_u32 v13, s24, v13
    ''' % (NRL, 32 * 3584, WS_WGU, 2 * 112 * 2048, WS_WDF, 112 * 2048))
    for i in range(8):
        k('global_load_dwordx4 v[%d:%d], v12, s[8:9]' % (16 + 4 * i, 19 + 4 * i))
        if i < 7: k('v_add_u32 v12, s23, v12')
    k('''
    v_lshl_add_u32 v14, v8, 3, v5
    v_mul_u32_u24 v14, 272, v14
    v_lshl_add_u32 v14, v11, 3, v14
    v_add_u32 v14, s24, v14
    v_lshlrev_b32 v15, 4, v1
    v_add_u32 v15, s18, v15
    ''')
    for i in range(8):
        k('s_waitcnt vmcnt(%d)' % (7 - i))
        k('ds_write_b128 v13, v[%d:%d] offset:%d' % (16 + 4 * i, 19 + 4 * i, 1088 * i))
    k('s_waitcnt lgkmcnt(0)')
    for cb in range(4):
        for kh in range(2):
            f = 2 * cb + kh
            for h in range(2):
                k('ds_read_b64_tr_b16 v[%d:%d], v14 offset:%d' % (48 + 4 * f + 2 * h, 49 + 4 * f + 2 * h, (16 * kh + 4 * h) * 272 + 64 * cb))
    k('''
    v_add_u32 v16, s21, v15
    v_add_u32 v17, s20, v15
    v_add_u32 v18, s21, v17
    v_add_u32 v19, s22, v15
    v_add_u32 v20, s22, v16
    v_add_u32 v21, s22, v17
    v_add_u32 v22, s22, v18
    ''')
    addr = {(0, 0): 15, (1, 0): 16, (2, 0): 17, (3, 0): 18, (0, 1): 19, (1, 1): 20, (2, 1): 21, (3, 1): 22}
    for cb in range(4):
        for kh in range(2):
            f = 2 * cb + kh
            k('s_waitcnt lgkmcnt(%d)' % (14 - 2 * f))
            k('global_store_dwordx4 v%d, v[%d:%d], s[6:7]' % (addr[(cb, kh)], 48 + 4 * f, 51 + 4 * f))
    k('s_endpgm')

    k('''
    L_k1_kgen:
    s_sub_u32 s3, s2, 232
    s_cmp_ge_u32 s3, 512
    s_cbranch_scc1 L_k1_end
    s_load_dwordx4 s[8:11], s[0:1], 8
    s_load_dwordx4 s[12:15], s[0:1], 24
    s_load_dwordx2 s[16:17], s[0:1], 40
    v_and_b32 v1, 63, v0
    v_lshrrev_b32 v2, 6, v0
    v_and_b32 v3, 31, v1
    v_lshl_add_u32 v3, v2, 5, v3
    s_lshl_b32 s18, s3, 7
    v_add_u32 v3, s18, v3
    v_lshlrev_b32 v3, 1, v3
    s_lshl_b32 s18, s3, 1
    v_mov_b32 v4, s18
    s_waitcnt lgkmcnt(0)
    global_load_ushort v5, v3, s[8:9]
    global_load_ushort v6, v3, s[10:11]
    global_load_ushort v7, v3, s[12:13]
    global_load_ushort v8, v3, s[14:15]
    global_load_ushort v9, v4, s[16:17]
    v_lshrrev_b32 v10, 4, v1
    v_and_b32 v11, 15, v1
    v_lshlrev_b32 v12, v10, v11
    v_mov_b32 v13, 0x80
    v_lshlrev_b32 v13, v10, v13
    v_and_b32 v13, 0xffffff7f, v13
    v_lshl_add_u32 v13, v12, 4, v13
    v_cvt_f32_u32 v12, v12
    v_cvt_f32_u32 v13, v13
    ''')
    for i in range(16): k('v_mov_b32 v%d, 0' % (32 + i))
    k('''
    s_waitcnt vmcnt(0)
    v_lshlrev_b32 v5, 16, v5
    v_lshlrev_b32 v6, 16, v6
    v_lshlrev_b32 v7, 16, v7
    v_lshlrev_b32 v8, 16, v8
    v_lshlrev_b32 v9, 16, v9
    v_mul_f32 v5, 0x%x, v5
    v_mul_f32 v9, 0x%x, v9
    v_exp_f32 v5, v5
    v_exp_f32 v9, v9
    s_nop 0
    v_cvt_pk_bf16_f32 v5, v5, v9
    v_and_b32 v9, 0xffff0000, v5
    v_lshlrev_b32 v5, 16, v5
    v_mul_f32 v5, v5, v9
    v_mul_f32 v6, v6, v9
    v_mul_f32 v7, v7, v9
    v_mul_f32 v8, v8, v9
    v_mul_f32 v5, 0x%x, v5
    v_mul_f32 v6, 0x%x, v6
    v_add_f32 v7, v7, v7
    v_add_f32 v8, v8, v8
    ''' % (LOG2E, LOG2E, LOG2E | 0x80000000, INV2PI))
    def rl(n):
        b = 20 + 4 * (n & 1)
        k('v_readlane_b32 s%d, v5, %d' % (b, n))
        k('v_readlane_b32 s%d, v6, %d' % (b + 1, n))
        k('v_readlane_b32 s%d, v7, %d' % (b + 2, n))
        k('v_readlane_b32 s%d, v8, %d' % (b + 3, n))
    rl(0)
    for n in range(32):
        b = 20 + 4 * (n & 1)
        T = 16 + 8 * 0
        o = 48 + 4 * (n & 1)
        if n + 1 < 32: rl(n + 1)
        k('v_mul_f32 v16, s%d, v13' % b)
        k('v_mul_f32 v17, s%d, v12' % b)
        k('v_mul_f32 v18, s%d, v13' % (b + 1))
        k('v_mul_f32 v19, s%d, v12' % (b + 1))
        k('v_exp_f32 v16, v16')
        k('v_exp_f32 v17, v17')
        k('v_sin_f32 v20, v18')
        k('v_cos_f32 v21, v18')
        k('v_sin_f32 v22, v19')
        k('v_cos_f32 v23, v19')
        k('v_mul_f32 v24, s%d, v21' % (b + 2))
        k('v_mul_f32 v25, s%d, v20' % (b + 2))
        k('v_fma_f32 v24, -s%d, v20, v24' % (b + 3))
        k('v_fma_f32 v25, s%d, v21, v25' % (b + 3))
        k('v_mul_f32 v%d, v17, v23' % (o + 2))
        k('v_mul_f32 v%d, v17, v22' % (o + 3))
        k('v_mul_f32 v%d, v16, v24' % o)
        k('v_mul_f32_e64 v%d, -v16, v25' % (o + 1))
        k('v_mfma_f32_16x16x1_4b_f32 v[32:47], v%d, v%d, v[32:47]' % (o, o + 2))
        k('v_mfma_f32_16x16x1_4b_f32 v[32:47], v%d, v%d, v[32:47]' % (o + 1, o + 3))
    k('''
    v_lshlrev_b32 v3, 12, v2
    v_lshl_add_u32 v3, v1, 2, v3
    ''')
    for r in range(16):
        k('ds_write_b32 v3, v%d offset:%d' % (32 + r, 256 * r))
    k('''
    v_lshlrev_b32 v3, 4, v0
    s_waitcnt lgkmcnt(0)
    s_barrier
    ds_read_b128 v[16:19], v3
    ds_read_b128 v[20:23], v3 offset:4096
    ds_read_b128 v[24:27], v3 offset:8192
    ds_read_b128 v[28:31], v3 offset:12288
    s_waitcnt lgkmcnt(0)
    ''')
    for i in range(4):
        k('v_add_f32 v%d, v%d, v%d' % (16 + i, 16 + i, 20 + i))
        k('v_add_f32 v%d, v%d, v%d' % (24 + i, 24 + i, 28 + i))
    for i in range(4):
        k('v_add_f32 v%d, v%d, v%d' % (16 + i, 16 + i, 24 + i))
    k('''
    ds_write_b128 v3, v[16:19] offset:16384
    v_lshlrev_b32 v4, 3, v0
    v_sub_u32 v4, 0x7ff, v4
    ''')
    for e in range(8):
        k('v_subrev_u32 v%d, %d, v4' % (16 + e, e))
        k('v_cvt_f32_u32 v%d, v%d' % (16 + e, 16 + e))
    for m in range(4):
        k('v_cvt_pk_bf16_f32 v%d, v%d, v%d' % (24 + m, 16 + 2 * m, 17 + 2 * m))
    for m in range(4):
        k('v_lshlrev_b32 v%d, 16, v%d' % (16 + 2 * m, 24 + m))
        k('v_and_b32 v%d, 0xffff0000, v%d' % (17 + 2 * m, 24 + m))
    k('v_mov_b32 v5, 0x80')
    for e in range(8):
        p = 16 + e
        k('v_cvt_u32_f32 v%d, v%d' % (p, p))
        k('v_or_b32 v24, 1, v%d' % p)
        k('v_ffbh_u32 v24, v24')
        k('v_sub_u32 v24, 24, v24')
        k('v_max_i32 v24, 0, v24')
        k('v_min_i32 v24, 3, v24')
        k('v_lshlrev_b32 v25, v24, v5')
        k('v_and_b32 v25, 0xffffff7f, v25')
        k('v_sub_u32 v25, v%d, v25' % p)
        k('v_lshrrev_b32 v25, v24, v25')
        k('v_lshrrev_b32 v26, 4, v25')
        k('v_and_b32 v25, 15, v25')
        k('v_and_b32 v27, 3, v26')
        k('v_lshl_add_u32 v27, v24, 2, v27')
        k('v_lshrrev_b32 v26, 2, v26')
        k('v_lshl_add_u32 v25, v26, 4, v25')
        k('v_lshl_add_u32 v25, v27, 6, v25')
        k('v_lshlrev_b32 v%d, 2, v25' % p)
    k('''
    s_waitcnt lgkmcnt(0)
    s_barrier
    ''')
    for e in range(8):
        k('ds_read_b32 v%d, v%d offset:16384' % (32 + e, 16 + e))
    k('''
    s_mul_i32 s18, s3, %d
    v_lshlrev_b32 v3, 4, v0
    v_add_u32 v3, s18, v3
    v_add_u32 v4, 0x%x, v3
    v_add_u32 v3, 0x%x, v3
    s_waitcnt lgkmcnt(0)
    ''' % (KROW, WS_KLO, WS_KHI))
    for m in range(4):
        k('v_cvt_pk_bf16_f32 v%d, v%d, v%d' % (16 + m, 32 + 2 * m, 33 + 2 * m))
    for m in range(4):
        k('v_lshlrev_b32 v24, 16, v%d' % (16 + m))
        k('v_and_b32 v25, 0xffff0000, v%d' % (16 + m))
        k('v_sub_f32 v24, v%d, v24' % (32 + 2 * m))
        k('v_sub_f32 v25, v%d, v25' % (33 + 2 * m))
        k('v_cvt_pk_bf16_f32 v%d, v24, v25' % (20 + m))
    k('''
    global_store_dwordx4 v3, v[16:19], s[6:7]
    global_store_dwordx4 v4, v[20:23], s[6:7]
    v_mov_b32 v24, 0
    v_mov_b32 v25, 0
    v_mov_b32 v26, 0
    v_mov_b32 v27, 0
    v_cmp_gt_u32 vcc, 2, v0
    s_and_saveexec_b64 s[18:19], vcc
    v_add_u32 v3, 0x1000, v3
    v_add_u32 v4, 0x1000, v4
    global_store_dwordx4 v3, v[24:27], s[6:7]
    global_store_dwordx4 v4, v[24:27], s[6:7]
    L_k1_end:
    s_endpgm
    ''')
    return k
```

```python
from asmlib import *
from k1 import *
import struct

def f32(x): return struct.unpack('<I', struct.pack('<f', x))[0]
NG1 = 224
CP = 4176
XB = 8 * CP
RB = XB + 4608
STG = 24576

def interleave(lists):
    out = []
    n = max(len(l) for l in lists)
    for i in range(n):
        for l in lists:
            if i < len(l): out.append(l[i])
    return out

def build():
    k = Kernel('gemm1_conv_kernel')
    k('''
    s_load_dwordx2 s[6:7], s[0:1], 104
    s_cmp_ge_u32 s2, %d
    s_cbranch_scc1 L_k2_conv
    v_and_b32 v1, 63, v0
    v_lshrrev_b32 v2, 6, v0
    v_readfirstlane_b32 s3, v2
    s_and_b32 s4, s2, 15
    s_lshr_b32 s5, s2, 4
    v_lshlrev_b32 v3, 4, v1
    v_lshl_add_u32 v4, v2, 11, v3
    v_lshl_add_u32 v5, v2, 12, v3
    s_lshl_b32 s8, s4, 17
    s_lshl_b32 s9, s5, 18
    s_add_u32 s9, s9, 0x%x
    s_lshl_b32 s14, s3, 11
    s_lshl_b32 s15, s3, 12
    s_add_u32 s15, s15, 8192
    s_waitcnt lgkmcnt(0)
    s_add_u32 s10, s6, s8
    s_addc_u32 s11, s7, 0
    s_add_u32 s12, s6, s9
    s_addc_u32 s13, s7, 0
    ''' % (NG1, WS_WGU))
    def dma(stage):
        sb = STG * (stage % 3)
        L = []
        L.append(['s_add_u32 m0, s14, %d' % sb,
                  's_nop 0',
                  'global_load_lds_dwordx4 v4, s[10:11]'])
        L.append(['global_load_lds_dwordx4 v4, s[10:11] offset:1024',
                  's_add_u32 s10, s10, 8192',
                  's_addc_u32 s11, s11, 0'])
        L.append(['s_add_u32 m0, s15, %d' % sb,
                  's_nop 0',
                  'global_load_lds_dwordx4 v5, s[12:13]'])
        L.append(['global_load_lds_dwordx4 v5, s[12:13] offset:1024'])
        L.append(['global_load_lds_dwordx4 v5, s[12:13] offset:2048'])
        L.append(['global_load_lds_dwordx4 v5, s[12:13] offset:3072',
                  's_add_u32 s12, s12, 16384',
                  's_addc_u32 s13, s13, 0'])
        return L
    for st in range(2):
        for grp in dma(st):
            for l in grp: k(l)
    k('''
    v_and_b32 v6, 1, v2
    v_lshl_add_u32 v6, v6, 12, v3
    v_lshrrev_b32 v7, 1, v2
    v_lshl_add_u32 v7, v7, 12, v3
    v_add_u32 v7, 8192, v7
    ''')
    for i in range(128): k('v_mov_b32 v%d, 0' % (64 + i))
    def acc(mat, a, b): return 64 + 16 * ((mat * 2 + a) * 2 + b)
    def wf(kh, mat, a): return 16 + 24 * kh + 4 * (mat * 2 + a)
    def xf(kh, b): return 16 + 24 * kh + 16 + 4 * b
    for s in range(16):
        sb = STG * (s % 3)
        k('s_waitcnt vmcnt(%d)' % (6 if s < 15 else 0))
        k('s_barrier')
        for kh in range(2):
            for b in range(2):
                r = xf(kh, b)
                k('ds_read_b128 v[%d:%d], v6 offset:%d' % (r, r + 3, sb + b * 2048 + kh * 1024))
            for mat in range(2):
                for a in range(2):
                    r = wf(kh, mat, a)
                    k('ds_read_b128 v[%d:%d], v7 offset:%d' % (r, r + 3, sb + mat * 8192 + a * 2048 + kh * 1024))
        D = dma(s + 2) if s + 2 < 16 else []
        di = 0
        for kh in range(2):
            k('s_waitcnt lgkmcnt(%d)' % (6 if kh == 0 else 0))
            for mat in range(2):
                for a in range(2):
                    for b in range(2):
                        A = acc(mat, a, b)
                        k('v_mfma_f32_32x32x16_bf16 v[%d:%d], v[%d:%d], v[%d:%d], v[%d:%d]' % (
                            A, A + 15, wf(kh, mat, a), wf(kh, mat, a) + 3, xf(kh, b), xf(kh, b) + 3, A, A + 15))
                        if di < len(D):
                            for l in D[di]: k(l)
                            di += 1
    c0 = -2.0 * 1.4426950408889634 * 0.7978845608028654
    c1 = c0 * 0.044715
    k('''
    v_mov_b32 v8, 0x%x
    v_mov_b32 v9, 0x%x
    v_mov_b32 v10, 0x%x
    v_mov_b32 v11, 0x%x
    v_mov_b32 v12, 1.0
    v_mov_b32 v13, 1.0
    s_lshl_b32 s16, s4, 1
    s_and_b32 s17, s3, 1
    s_add_u32 s16, s16, s17
    s_mul_i32 s16, s16, %d
    s_lshl_b32 s17, s5, 3
    s_lshr_b32 s18, s3, 1
    s_lshl_b32 s18, s18, 2
    s_add_u32 s17, s17, s18
    s_lshl_b32 s17, s17, 11
    s_add_u32 s16, s16, s17
    s_add_u32 s16, s16, 0x%x
    v_add_u32 v14, s16, v3
    v_add_u32 v15, 0x1000, v14
    ''' % (f32(c0), f32(c0), f32(c1), f32(c1), 112 * 2048, WS_H))
    def pair(G, U, T, O):
        g, x, e, u = T, T + 2, T + 4, T + 6
        return [
            'v_cvt_pk_bf16_f32 v%d, v%d, v%d' % (x, G, G + 1),
            'v_cvt_pk_bf16_f32 v%d, v%d, v%d' % (u + 1, U, U + 1),
            'v_lshlrev_b32 v%d, 16, v%d' % (g, x),
            'v_and_b32 v%d, 0xffff0000, v%d' % (g + 1, x),
            'v_pk_mul_f32 v[%d:%d], v[%d:%d], v[%d:%d]' % (x, x + 1, g, g + 1, g, g + 1),
            'v_pk_fma_f32 v[%d:%d], v[%d:%d], v[10:11], v[8:9]' % (x, x + 1, x, x + 1),
            'v_pk_mul_f32 v[%d:%d], v[%d:%d], v[%d:%d]' % (x, x + 1, x, x + 1, g, g + 1),
            'v_exp_f32 v%d, v%d' % (e, x),
            'v_exp_f32 v%d, v%d' % (e + 1, x + 1),
            'v_lshlrev_b32 v%d, 16, v%d' % (u, u + 1),
            'v_and_b32 v%d, 0xffff0000, v%d' % (u + 1, u + 1),
            'v_pk_add_f32 v[%d:%d], v[%d:%d], v[12:13]' % (e, e + 1, e, e + 1),
            'v_rcp_f32 v%d, v%d' % (e, e),
            'v_rcp_f32 v%d, v%d' % (e + 1, e + 1),
            'v_pk_mul_f32 v[%d:%d], v[%d:%d], v[%d:%d]' % (x, x + 1, g, g + 1, e, e + 1),
            'v_cvt_pk_bf16_f32 v%d, v%d, v%d' % (e, x, x + 1),
            'v_lshlrev_b32 v%d, 16, v%d' % (x, e),
            'v_and_b32 v%d, 0xffff0000, v%d' % (x + 1, e),
            'v_pk_mul_f32 v[%d:%d], v[%d:%d], v[%d:%d]' % (x, x + 1, x, x + 1, u, u + 1),
            'v_cvt_pk_bf16_f32 v%d, v%d, v%d' % (O, x, x + 1),
        ]
    cnt = 0
    for a in range(2):
        for b in range(2):
            G = acc(0, a, b); U = acc(1, a, b)
            for half in range(2):
                O = 48 + 4 * (cnt & 3)
                cnt += 1
                for l in interleave([pair(G + 8 * half + 2 * p, U + 8 * half + 2 * p, 16 + 8 * p, O + p) for p in range(4)]):
                    k(l)
                k('global_store_dwordx4 v%d, v[%d:%d], s[6:7] offset:%d' % (14 + a, O, O + 3, half * 2048 + b * 1024))
    k('s_endpgm')

    k('''
    L_k2_conv:
    s_sub_u32 s3, s2, %d
    s_cmp_ge_u32 s3, 512
    s_cbranch_scc1 L_k2_end
    s_load_dwordx2 s[4:5], s[0:1], 48
    s_mul_i32 s8, s3, %d
    s_add_u32 s8, s8, 0x%x
    s_lshl_b32 s9, s3, 12
    s_add_u32 s10, s9, 0x%x
    s_add_u32 s9, s9, 0x%x
    v_lshlrev_b32 v3, 4, v0
    v_add_u32 v4, s8, v3
    v_add_u32 v5, s10, v3
    v_add_u32 v6, s9, v3
    s_lshl_b32 s11, s3, 1
    v_mov_b32 v7, s11
    v_and_b32 v1, 63, v0
    v_lshrrev_b32 v2, 6, v0
    s_waitcnt lgkmcnt(0)
    global_load_dwordx4 v[16:19], v4, s[6:7]
    global_load_dwordx4 v[20:23], v4, s[6:7] offset:16
    global_load_dwordx4 v[24:27], v5, s[6:7]
    global_load_ushort v28, v7, s[4:5]
    v_mov_b32 v32, 0
    v_mov_b32 v33, 0
    v_mov_b32 v34, 0
    v_mov_b32 v35, 0
    v_mul_u32_u24 v8, %d, v0
    v_cmp_gt_u32 vcc, 8, v0
    s_and_saveexec_b64 s[12:13], vcc
    ds_write_b128 v8, v[32:35] offset:4096
    s_mov_b64 exec, s[12:13]
    v_cmp_gt_u32 vcc, 32, v0
    s_and_saveexec_b64 s[12:13], vcc
    ds_write_b128 v3, v[32:35] offset:%d
    s_mov_b64 exec, s[12:13]
    ''' % (NG1, KROW, WS_KHI, WS_XNT, WS_AOT, CP, XB))
    k('''
    v_lshrrev_b32 v9, 4, v1
    v_and_b32 v10, 15, v1
    v_lshrrev_b32 v11, 3, v10
    v_and_b32 v12, 7, v10
    v_mul_u32_u24 v12, %d, v12
    v_sub_u32 v13, v9, v11
    v_lshlrev_b32 v13, 4, v13
    v_add_u32 v12, v12, v13
    v_lshlrev_b32 v13, 7, v2
    v_sub_u32 v12, v12, v13
    v_add_u32 v12, %d, v12
    v_lshlrev_b32 v14, 5, v10
    v_lshl_add_u32 v14, v9, 4, v14
    v_sub_u32 v14, v14, v13
    v_add_u32 v14, %d, v14
    v_lshlrev_b32 v15, 6, v10
    v_lshl_add_u32 v15, v9, 4, v15
    v_lshl_add_u32 v15, v2, 13, v15
    ''' % (CP, 4080 - 32 * 3 - 3584, XB + 512 - 32 * 3))
    for i in range(32): k('v_mov_b32 v%d, 0' % (192 + i))
    k('s_waitcnt vmcnt(2)')
    for kk in range(6):
        k('v_alignbit_b32 v%d, v%d, v%d, 16' % (36 + kk, 17 + kk, 16 + kk))
        k('v_alignbit_b32 v%d, v%d, v%d, 16' % (52 + kk, 18 + kk, 17 + kk))
        k('v_mov_b32 v%d, v%d' % (44 + kk, 17 + kk))
    for r in range(8):
        sh = 7 - r
        src = {0: 16, 2: 44, 4: 18, 6: 46, 1: 36, 3: 52, 5: 38, 7: 54}[sh]
        k('ds_write_b128 v3, v[%d:%d] offset:%d' % (src, src + 3, r * CP))
    k('''
    s_waitcnt vmcnt(1)
    ds_write_b128 v3, v[24:27] offset:%d
    s_waitcnt lgkmcnt(0)
    s_barrier
    ''' % (XB + 512))
    def af(set_, m): return 64 + 64 * set_ + 4 * m
    def bf(set_, dl): return 64 + 64 * set_ + 32 + 4 * dl
    def reads(set_):
        ex = 64 if set_ == 0 else 0
        for m in range(8):
            k('ds_read_b128 v[%d:%d], v12 offset:%d' % (af(set_, m), af(set_, m) + 3, 512 * (7 - m) + ex))
            k('ds_read_b128 v[%d:%d], v14 offset:%d' % (bf(set_, m), bf(set_, m) + 3, 512 * m + ex))
    def mm(set_):
        for m in range(8):
            for n in range(m, 8):
                A = 192 + 4 * n
                k('v_mfma_f32_16x16x32_bf16 v[%d:%d], v[%d:%d], v[%d:%d], v[%d:%d]' % (
                    A, A + 3, af(set_, m), af(set_, m) + 3, bf(set_, n - m), bf(set_, n - m) + 3, A, A + 3))
    reads(0)
    k('s_waitcnt lgkmcnt(0)')
    reads(1)
    mm(0)
    k('s_waitcnt lgkmcnt(0)')
    mm(1)
    for n in range(8):
        k('ds_write_b128 v15, v[%d:%d] offset:%d' % (192 + 4 * n, 195 + 4 * n, RB + 1024 * n))
    k('''
    v_lshlrev_b32 v9, 5, v0
    s_waitcnt vmcnt(0)
    v_lshlrev_b32 v28, 16, v28
    s_waitcnt lgkmcnt(0)
    s_barrier
    ''')
    for w in range(4):
        for hf in range(2):
            r = 64 + 8 * w + 4 * hf
            k('ds_read_b128 v[%d:%d], v9 offset:%d' % (r, r + 3, RB + 8192 * w + 16 * hf))
    for i in range(4):
        k('v_lshlrev_b32 v%d, 16, v%d' % (40 + 2 * i, 24 + i))
        k('v_and_b32 v%d, 0xffff0000, v%d' % (41 + 2 * i, 24 + i))
    for i in range(8): k('v_mul_f32 v%d, v%d, v28' % (40 + i, 40 + i))
    for i in range(4): k('v_cvt_pk_bf16_f32 v%d, v%d, v%d' % (48 + i, 40 + 2 * i, 41 + 2 * i))
    for i in range(4):
        k('v_lshlrev_b32 v%d, 16, v%d' % (40 + 2 * i, 48 + i))
        k('v_and_b32 v%d, 0xffff0000, v%d' % (41 + 2 * i, 48 + i))
    k('s_waitcnt lgkmcnt(0)')
    for i in range(8):
        k('v_add_f32 v%d, v%d, v%d' % (64 + i, 64 + i, 72 + i))
        k('v_add_f32 v%d, v%d, v%d' % (80 + i, 80 + i, 88 + i))
    for i in range(8): k('v_add_f32 v%d, v%d, v%d' % (64 + i, 64 + i, 80 + i))
    for i in range(4): k('v_cvt_pk_bf16_f32 v%d, v%d, v%d' % (48 + i, 64 + 2 * i, 65 + 2 * i))
    for i in range(4):
        k('v_lshlrev_b32 v%d, 16, v%d' % (64 + 2 * i, 48 + i))
        k('v_and_b32 v%d, 0xffff0000, v%d' % (65 + 2 * i, 48 + i))
    for i in range(8): k('v_add_f32 v%d, v%d, v%d' % (64 + i, 64 + i, 40 + i))
    for i in range(4): k('v_cvt_pk_bf16_f32 v%d, v%d, v%d' % (48 + i, 64 + 2 * i, 65 + 2 * i))
    k('''
    global_store_dwordx4 v6, v[48:51], s[6:7]
    L_k2_end:
    s_endpgm
    ''')
    return (k, 224, 0, NG1 + 512, 73728)
```

```python
from asmlib import *
from k1 import *

P = 8
NS = 28
BUF = 40
ACC = 168

def build():
    k = Kernel('gemm2_out_kernel')
    k('''
    s_cmp_ge_u32 s2, 256
    s_cbranch_scc1 L_k3_end
    s_load_dwordx2 s[4:5], s[0:1], 0
    s_load_dwordx2 s[6:7], s[0:1], 104
    s_load_dwordx2 s[8:9], s[0:1], 88
    v_and_b32 v1, 63, v0
    v_lshrrev_b32 v2, 6, v0
    v_readfirstlane_b32 s3, v2
    s_lshr_b32 s10, s2, 5
    s_and_b32 s11, s2, 7
    s_lshl_b32 s11, s11, 1
    s_bfe_u32 s12, s2, 0x10003
    s_or_b32 s11, s11, s12
    s_and_b32 s12, s2, 16
    s_or_b32 s11, s11, s12
    s_lshr_b32 s12, s3, 1
    s_and_b32 s13, s3, 1
    s_mul_i32 s14, s3, 28
    s_mul_i32 s15, s11, 112
    s_add_u32 s15, s15, s14
    s_lshl_b32 s15, s15, 11
    s_add_u32 s15, s15, 0x%x
    s_mul_i32 s16, s10, 112
    s_add_u32 s16, s16, s14
    s_lshl_b32 s16, s16, 11
    s_add_u32 s16, s16, 0x%x
    v_lshlrev_b32 v3, 4, v1
    s_lshl_b32 s17, s12, 10
    s_add_u32 s18, s16, s17
    v_add_u32 v4, s18, v3
    v_xor_b32 v5, 0x400, v4
    s_lshl_b32 s17, s13, 10
    s_add_u32 s18, s15, s17
    v_add_u32 v6, s18, v3
    v_xor_b32 v7, 0x400, v6
    ''' % (WS_H, WS_WDF))
    k('''
    v_and_b32 v8, 31, v1
    s_lshl_b32 s17, s11, 6
    s_lshl_b32 s18, s13, 5
    s_add_u32 s17, s17, s18
    v_add_u32 v8, s17, v8
    v_lshrrev_b32 v9, 5, v1
    v_lshlrev_b32 v9, 4, v9
    s_lshl_b32 s17, s10, 6
    s_lshl_b32 s18, s12, 5
    s_add_u32 s17, s17, s18
    v_add_u32 v9, s17, v9
    v_lshlrev_b32 v10, 10, v8
    v_lshl_add_u32 v10, v9, 1, v10
    v_lshlrev_b32 v11, 12, v9
    v_lshl_add_u32 v11, v8, 1, v11
    v_add_u32 v11, 0x%x, v11
    s_waitcnt lgkmcnt(0)
    global_load_dwordx4 v[16:19], v10, s[4:5]
    global_load_dwordx4 v[20:23], v10, s[4:5] offset:16
    ''' % WS_AOT)
    for r in range(16):
        k('global_load_ushort v%d, v11, s[6:7]' % (24 + r))
        if r < 15: k('v_add_u32 v11, 0x1000, v11')
    def loads(s):
        B = BUF + 16 * (s % P)
        off = 2048 * (s & 1)
        L = []
        for j, a in enumerate((4, 5, 6, 7)):
            L.append('global_load_dwordx4 v[%d:%d], v%d, s[6:7] offset:%d' % (B + 4 * j, B + 4 * j + 3, a, off))
        if s & 1:
            for a in (4, 5, 6, 7): L.append('v_add_u32 v%d, 0x1000, v%d' % (a, a))
        return L
    for s in range(P - 1):
        for l in loads(s): k(l)
    for i in range(64): k('v_mov_b32 v%d, 0' % (ACC + i))
    for s in range(NS):
        B = BUF + 16 * (s % P)
        last = min(s + P - 2, NS - 1)
        k('s_waitcnt vmcnt(%d)' % (4 * (last - s)))
        L = loads(s + P - 1) if s + P - 1 < NS else []
        li = 0
        for a in range(2):
            for b in range(2):
                A = ACC + 16 * (2 * a + b)
                k('v_mfma_f32_32x32x16_bf16 v[%d:%d], v[%d:%d], v[%d:%d], v[%d:%d]' % (
                    A, A + 15, B + 4 * a, B + 4 * a + 3, B + 8 + 4 * b, B + 8 + 4 * b + 3, A, A + 15))
                for _ in range(2):
                    if li < len(L):
                        k(L[li]); li += 1
    k('''
    s_lshl_b32 s17, s12, 1
    s_or_b32 s17, s17, s13
    ''')
    for sl in range(1, 4):
        k('s_xor_b32 s18, s17, %d' % sl)
        k('s_mul_i32 s18, s18, 12288')
        k('v_add_u32 v%d, s18, v3' % (11 + sl))
        for q in range(4):
            A = ACC + 16 * sl + 4 * q
            k('ds_write_b128 v%d, v[%d:%d] offset:%d' % (11 + sl, A, A + 3, (sl - 1) * 4096 + 1024 * q))
    k('''
    s_mul_i32 s18, s17, 12288
    v_add_u32 v12, s18, v3
    s_waitcnt lgkmcnt(0)
    s_barrier
    ''')
    for sl in range(3):
        for q in range(4):
            R = BUF + 16 * sl + 4 * q
            k('ds_read_b128 v[%d:%d], v12 offset:%d' % (R, R + 3, sl * 4096 + 1024 * q))
    for r in range(16):
        k('v_lshlrev_b32 v%d, 16, v%d' % (24 + r, 24 + r))
    for i in range(8):
        k('v_lshlrev_b32 v%d, 16, v%d' % (96 + 2 * i, 16 + i))
        k('v_and_b32 v%d, 0xffff0000, v%d' % (97 + 2 * i, 16 + i))
    for r in range(16):
        k('v_add_f32 v%d, v%d, v%d' % (24 + r, 24 + r, 96 + r))
    for i in range(8):
        k('v_cvt_pk_bf16_f32 v%d, v%d, v%d' % (16 + i, 24 + 2 * i, 25 + 2 * i))
    for i in range(8):
        k('v_lshlrev_b32 v%d, 16, v%d' % (24 + 2 * i, 16 + i))
        k('v_and_b32 v%d, 0xffff0000, v%d' % (25 + 2 * i, 16 + i))
    k('s_waitcnt lgkmcnt(0)')
    for r in range(16):
        k('v_add_f32 v%d, v%d, v%d' % (BUF + r, BUF + r, BUF + 16 + r))
        k('v_add_f32 v%d, v%d, v%d' % (ACC + r, ACC + r, BUF + 32 + r))
    for r in range(16):
        k('v_add_f32 v%d, v%d, v%d' % (ACC + r, ACC + r, BUF + r))
    for i in range(8):
        k('v_cvt_pk_bf16_f32 v%d, v%d, v%d' % (16 + i, ACC + 2 * i, ACC + 2 * i + 1))
    for i in range(8):
        k('v_lshlrev_b32 v%d, 16, v%d' % (ACC + 2 * i, 16 + i))
        k('v_and_b32 v%d, 0xffff0000, v%d' % (ACC + 2 * i + 1, 16 + i))
    for r in range(16):
        k('v_add_f32 v%d, v%d, v%d' % (24 + r, 24 + r, ACC + r))
    for i in range(8):
        k('v_cvt_pk_bf16_f32 v%d, v%d, v%d' % (16 + i, 24 + 2 * i, 25 + 2 * i))
    k('''
    global_store_dwordx4 v10, v[16:19], s[8:9]
    global_store_dwordx4 v10, v[20:23], s[8:9] offset:16
    L_k3_end:
    s_endpgm
    ''')
    return (k, 232, 0, 256, 49152)
```

```python
import sys
sys.path.insert(0, 'gen')
from asmlib import *
import k1
HDR = open('parallel_sum__ssm_conv_s4d__glu_gated_geglu__prompt.s.ref').read().split('; Override launch')[0]
kernels = []
K1 = k1.build_k1('ln_kgen_kernel')
kernels.append((K1, 96, 0, 64 + 168 + 512, 34816))
try:
    import k2
    kernels.append(k2.build())
except ImportError:
    pass
try:
    import k3
    kernels.append(k3.build())
except ImportError:
    pass
out = [HDR.rstrip('\n')]
for (k, v, a, g, lds) in kernels:
    out.append('; @launch kernel=%s grid=(%d,1,1) block=(256,1,1) lds=%d' % (k.name, g, lds))
out.append('.amdgcn_target "amdgcn-amd-amdhsa--gfx950"')
out.append('.text')
for (k, v, a, g, lds) in kernels:
    out.append(kernel_text(k, v))
out.append('.section .rodata,"a"')
for (k, v, a, g, lds) in kernels:
    out.append('.p2align 6')
    out.append(kd_text(k.name, v, a))
dst = sys.argv[1] if len(sys.argv) > 1 else 'parallel_sum__ssm_conv_s4d__glu_gated_geglu__prompt.s'
open(dst, 'w').write('\n'.join(out) + '\n')
print('wrote', dst)
```

```python
from asmlib import *
import os, struct

def f32(x): return struct.unpack('<I', struct.pack('<f', x))[0]
ENV = lambda n, d: os.environ.get(n, d)
TS = int(ENV('TS', '0'))
WT = ' sc0 sc1'

WS_XF = 0
WS_XT = 0x200000
WS_AOT = 0xA00000
WS_H = 0xC00000
WS_WGU = 0x1400000
WS_WDF = 0x1800000
CT = 0x2000000
F1, F2, FH, F3, ACK = CT, CT + 0x400, CT + 0x800, CT + 0xC00, CT + 0x1000
HB = CT + 0x10000
LOG2E = 0x3fb8aa3b
INV2PI = 0x3e22f983
BOUND = 1 << 17
LDS = 81920
PRIO_A = int(ENV('PRIO_A', '3'))
PRIO_B = int(ENV('PRIO_B', '0'))

CP = 4176
XB = 8 * CP
AB = 38912
EXO = 77824
STG = 16384
NB = 5

class VQ:
    def __init__(self): self.q = []
    def clone(self):
        c = VQ(); c.q = list(self.q); return c
    def issue(self, tag, n=1): self.q += [tag] * n
    def wait(self, tag):
        idx = [i for i, t in enumerate(self.q) if t == tag]
        if not idx: return None
        n = len(self.q) - 1 - idx[-1]
        self.q = self.q[idx[-1] + 1:]
        return n

def interleave(lists):
    out = []
    n = max(len(l) for l in lists)
    for i in range(n):
        for l in lists:
            if i < len(l): out.append(l[i])
    return out

def build():
    k = Kernel('fused_kernel')
    nst = [0]
    def ts(i):
        if TS: k('s_memrealtime s[%d:%d]' % (60 + 2 * i, 61 + 2 * i))
    def tsout():
        if not TS: return
        k('s_waitcnt vmcnt(0)')
        ts(9)
        k('''
        s_waitcnt lgkmcnt(0)
        v_lshrrev_b32 v1, 6, v0
        v_readfirstlane_b32 s3, v1
        s_getreg_b32 s58, hwreg(HW_REG_HW_ID)
        s_getreg_b32 s59, hwreg(HW_REG_XCC_ID)
        ''')
        for i in range(10): k('v_mov_b32 v%d, s%d' % (16 + i, 60 + 2 * i))
        k('''
        v_mov_b32 v26, s58
        v_mov_b32 v27, s59
        s_lshl_b32 s16, s2, 8
        s_lshl_b32 s17, s3, 6
        s_add_u32 s16, s16, s17
        s_add_u32 s16, s16, 0x3400000
        v_mov_b32 v28, s16
        global_store_dwordx4 v28, v[16:19], s[6:7]
        global_store_dwordx4 v28, v[20:23], s[6:7] offset:16
        global_store_dwordx4 v28, v[24:27], s[6:7] offset:32
        ''')
    def poll(name, va, vd, wide=False):
        k('s_mov_b32 s96, 0')
        k('L_%s:' % name)
        if wide:
            k('global_load_dwordx4 v[%d:%d], v%d, s[6:7]%s' % (vd, vd + 3, va, WT))
            k('s_waitcnt vmcnt(0)')
            k('v_and_b32 v%d, v%d, v%d' % (vd, vd, vd + 1))
            k('v_and_b32 v%d, v%d, v%d' % (vd + 2, vd + 2, vd + 3))
            k('v_and_b32 v%d, v%d, v%d' % (vd, vd, vd + 2))
        else:
            k('global_load_dword v%d, v%d, s[6:7]%s' % (vd, va, WT))
            k('s_waitcnt vmcnt(0)')
        k('''
        v_cmp_ne_u32 vcc, 1, v%d
        s_cbranch_vccz L_%s_ok
        s_add_u32 s96, s96, 1
        s_cmp_lt_u32 s96, %d
        s_cbranch_scc0 L_%s_ok
        s_sleep 2
        s_branch L_%s
        L_%s_ok:
        ''' % (vd, name, BOUND, name, name, name))
    def handshake(name):
        k('s_mov_b32 s96, 0')
        k('L_%s:' % name)
        k('''
        global_load_dword v122, v121, s[6:7]%s
        s_waitcnt vmcnt(0)
        v_cmp_ne_u32 vcc, v122, v120
        s_cbranch_vccnz L_%s_ok
        s_add_u32 s96, s96, 1
        s_cmp_lt_u32 s96, %d
        s_cbranch_scc0 L_%s_ok
        s_sleep 1
        s_branch L_%s
        L_%s_ok:
        ''' % (WT, name, BOUND, name, name, name))

    ts(0)
    k('''
    s_cmp_ge_u32 s2, 512
    s_cbranch_scc1 L_end
    s_load_dwordx2 s[4:5], s[0:1], 0
    s_load_dwordx2 s[6:7], s[0:1], 104
    s_add_u32 s2, s2, 511
    s_and_b32 s2, s2, 511
    v_and_b32 v1, 63, v0
    v_lshrrev_b32 v2, 6, v0
    v_readfirstlane_b32 s14, v2
    s_and_b32 s8, s2, 63
    s_lshl_b32 s8, s8, 8
    s_add_u32 s8, s8, 0x%x
    v_mov_b32 v121, s8
    s_cmp_ge_u32 s2, 256
    s_cbranch_scc1 L_B
    s_setprio %d
    s_cmp_ge_u32 s14, 2
    s_cbranch_scc1 L_A_rl
    ''' % (HB, PRIO_A))
    k('''
    v_and_b32 v3, 15, v1
    v_lshrrev_b32 v4, 4, v1
    v_lshl_add_u32 v5, v2, 2, v4
    s_lshl_b32 s8, s2, 13
    v_lshlrev_b32 v6, 10, v5
    v_lshl_add_u32 v6, v3, 6, v6
    v_add_u32 v6, s8, v6
    v_mul_u32_u24 v7, 0x440, v5
    v_lshl_add_u32 v7, v3, 6, v7
    s_waitcnt lgkmcnt(0)
    ''')
    B = 16
    for c in range(4):
        k('global_load_dwordx4 v[%d:%d], v6, s[4:5] offset:%d' % (B + 4 * c, B + 3 + 4 * c, 16 * c))
    k('global_load_dword v120, v121, s[6:7]%s' % WT)
    k('''
    s_lshr_b32 s8, s2, 4
    s_lshl_b32 s8, s8, 17
    s_bfe_u32 s9, s2, 0x20002
    s_lshl_b32 s9, s9, 11
    s_add_u32 s8, s8, s9
    s_and_b32 s9, s2, 3
    s_lshl_b32 s9, s9, 7
    s_add_u32 s8, s8, s9
    v_lshlrev_b32 v13, 13, v3
    v_lshl_add_u32 v13, v5, 4, v13
    v_add_u32 v13, s8, v13
    v_lshrrev_b32 v9, 2, v1
    v_and_b32 v9, 3, v9
    v_lshl_add_u32 v9, v2, 2, v9
    v_mul_u32_u24 v9, 0x440, v9
    v_and_b32 v10, 3, v1
    v_lshl_add_u32 v9, v10, 3, v9
    v_lshl_add_u32 v9, v4, 5, v9
    s_lshl_b32 s8, s2, 13
    s_lshl_b32 s9, s14, 12
    s_add_u32 s8, s8, s9
    s_add_u32 s8, s8, 0x%x
    v_lshlrev_b32 v10, 3, v1
    v_add_u32 v10, s8, v10
    s_waitcnt vmcnt(1)
    ''' % WS_XT)
    ts(1)
    for i in range(16):
        k('v_lshlrev_b32 v%d, 16, v%d' % (48 + 2 * i, B + i))
        k('v_and_b32 v%d, 0xffff0000, v%d' % (49 + 2 * i, B + i))
    PB = 'op_sel:[0,0] op_sel_hi:[1,0]'
    k('v_pk_add_f32 v[80:81], v[48:49], v[50:51]')
    k('v_pk_add_f32 v[82:83], v[52:53], v[54:55]')
    for j in range(2, 8):
        k('v_pk_add_f32 v[80:81], v[80:81], v[%d:%d]' % (48 + 4 * j, 49 + 4 * j))
        k('v_pk_add_f32 v[82:83], v[82:83], v[%d:%d]' % (50 + 4 * j, 51 + 4 * j))
    k('v_pk_add_f32 v[80:81], v[80:81], v[82:83]')
    k('v_add_f32 v80, v80, v81')
    src, dst = 80, 81
    for r in (8, 4, 2, 1):
        k('v_add_f32_dpp v%d, v%d, v%d row_ror:%d row_mask:0xf bank_mask:0xf' % (dst, src, src, r))
        src, dst = dst, src
    k('v_mul_f32 v82, 0x3b000000, v%d' % src)
    for i in range(16):
        t = 88 + 2 * (i & 1)
        k('v_pk_add_f32 v[%d:%d], v[%d:%d], v[82:83] %s neg_lo:[0,1] neg_hi:[0,1]' % (t, t + 1, 48 + 2 * i, 49 + 2 * i, PB))
        if i < 2:
            k('v_pk_mul_f32 v[%d:%d], v[%d:%d], v[%d:%d]' % (84 + 2 * (i & 1), 85 + 2 * (i & 1), t, t + 1, t, t + 1))
        else:
            k('v_pk_fma_f32 v[%d:%d], v[%d:%d], v[%d:%d], v[%d:%d]' % (84 + 2 * (i & 1), 85 + 2 * (i & 1), t, t + 1, t, t + 1, 84 + 2 * (i & 1), 85 + 2 * (i & 1)))
    k('v_pk_add_f32 v[84:85], v[84:85], v[86:87]')
    k('v_add_f32 v84, v84, v85')
    src, dst = 84, 85
    for r in (8, 4, 2, 1):
        k('v_add_f32_dpp v%d, v%d, v%d row_ror:%d row_mask:0xf bank_mask:0xf' % (dst, src, src, r))
        src, dst = dst, src
    k('''
    v_mul_f32 v86, 0x3b000000, v%d
    v_cvt_pk_bf16_f32 v82, v82, v86
    v_and_b32 v86, 0xffff0000, v82
    v_lshlrev_b32 v82, 16, v82
    v_add_f32 v86, 0x3727c5ac, v86
    v_cvt_pk_bf16_f32 v86, v86, v86
    v_lshlrev_b32 v86, 16, v86
    v_sqrt_f32 v86, v86
    s_nop 0
    v_cvt_pk_bf16_f32 v86, v86, v86
    v_lshlrev_b32 v86, 16, v86
    v_rcp_f32 v84, v86
    ''' % src)
    for i in range(16):
        a, b = 48 + 2 * i, 49 + 2 * i
        t = 88 + 4 * (i & 1)
        k('v_pk_add_f32 v[%d:%d], v[%d:%d], v[82:83] %s neg_lo:[0,1] neg_hi:[0,1]' % (a, b, a, b, PB))
        k('v_cvt_pk_bf16_f32 v%d, v%d, v%d' % (t, a, b))
        k('v_lshlrev_b32 v%d, 16, v%d' % (a, t))
        k('v_and_b32 v%d, 0xffff0000, v%d' % (b, t))
        k('v_pk_mul_f32 v[%d:%d], v[%d:%d], v[84:85] %s' % (t, t + 1, a, b, PB))
        k('v_pk_fma_f32 v[%d:%d], v[%d:%d], v[86:87], v[%d:%d] op_sel:[0,0,0] op_sel_hi:[1,0,1] neg_lo:[1,0,0] neg_hi:[1,0,0]' % (t + 2, t + 3, t, t + 1, a, b))
        k('v_pk_fma_f32 v[%d:%d], v[%d:%d], v[84:85], v[%d:%d] op_sel:[0,0,0] op_sel_hi:[1,0,1]' % (t, t + 1, t + 2, t + 3, t, t + 1))
        k('v_cvt_pk_bf16_f32 v%d, v%d, v%d' % (B + i, t, t + 1))
        if (i & 3) == 3:
            c = i >> 2
            k('global_store_dwordx4 v13, v[%d:%d], s[6:7] offset:%d%s' % (B + 4 * c, B + 4 * c + 3, 512 * c, WT))
            k('ds_write_b128 v7, v[%d:%d] offset:%d' % (B + 4 * c, B + 4 * c + 3, 16 * c))
    k('s_waitcnt lgkmcnt(0)')
    for q in range(8):
        k('ds_read_b64_tr_b16 v[%d:%d], v9 offset:%d' % (48 + 2 * q, 49 + 2 * q, 128 * q))
    for q in range(8):
        k('s_waitcnt lgkmcnt(%d)' % (7 - q))
        k('global_store_dwordx2 v10, v[%d:%d], s[6:7] offset:%d%s' % (48 + 2 * q, 49 + 2 * q, 512 * q, WT))
    ts(2)
    k('''
    s_cmp_lg_u32 s14, 0
    s_cbranch_scc1 L_A_p1w
    ''')
    handshake('A_hs')
    k('s_branch L_A_p1w')

    k('''
    L_A_rl:
    s_cmp_ge_u32 s2, 224
    s_cbranch_scc1 L_A_p1w
    s_and_b32 s8, s2, 3
    s_lshl_b32 s8, s8, 2
    s_bfe_u32 s9, s2, 0x20003
    s_or_b32 s8, s8, s9
    s_bfe_u32 s9, s2, 0x10002
    s_mul_i32 s9, s9, 7
    s_lshr_b32 s10, s2, 5
    s_add_u32 s9, s9, s10
    s_lshl_b32 s3, s9, 4
    s_add_u32 s3, s3, s8
    s_and_b32 s8, s14, 1
    s_mul_i32 s8, s8, 224
    s_add_u32 s3, s3, s8
    s_mov_b32 s95, 0
    L_rl:
    s_load_dwordx4 s[8:11], s[0:1], 64
    s_load_dwordx2 s[12:13], s[0:1], 80
    v_lshrrev_b32 v3, 4, v1
    v_and_b32 v4, 15, v1
    v_lshrrev_b32 v5, 2, v1
    v_and_b32 v5, 3, v5
    v_and_b32 v6, 3, v1
    v_and_b32 v7, 1, v3
    v_lshrrev_b32 v8, 1, v3
    v_and_b32 v9, 1, v6
    v_lshrrev_b32 v10, 1, v6
    s_waitcnt lgkmcnt(0)
    s_cmp_ge_u32 s3, 448
    s_cbranch_scc1 L_rl_d
    s_cmp_ge_u32 s3, 224
    s_cselect_b32 s8, s10, s8
    s_cselect_b32 s9, s11, s9
    s_cselect_b32 s15, 1, 0
    s_cselect_b32 s16, 224, 0
    s_sub_u32 s25, s3, s16
    s_lshr_b32 s16, s25, 4
    s_and_b32 s17, s25, 15
    s_mul_i32 s18, s17, %d
    s_lshl_b32 s19, s16, 8
    s_add_u32 s18, s18, s19
    s_add_u32 s8, s8, s18
    s_addc_u32 s9, s9, 0
    s_lshl_b32 s18, s25, 1
    s_add_u32 s18, s18, s15
    s_lshl_b32 s18, s18, 13
    s_add_u32 s18, s18, 0x%x
    s_movk_i32 s19, 3584
    s_movk_i32 s20, 4096
    s_movk_i32 s21, 2048
    s_movk_i32 s22, 1024
    v_lshlrev_b32 v11, 2, v7
    v_lshl_add_u32 v11, v9, 1, v11
    v_add_u32 v11, v11, v10
    s_branch L_rl_go
    L_rl_d:
    s_sub_u32 s25, s3, 448
    s_lshr_b32 s16, s25, 2
    s_and_b32 s17, s25, 3
    s_lshl_b32 s18, s16, 15
    s_lshl_b32 s19, s17, 8
    s_add_u32 s18, s18, s19
    s_add_u32 s8, s12, s18
    s_addc_u32 s9, s13, 0
    s_mul_i32 s18, s17, %d
    s_lshl_b32 s19, s16, 12
    s_add_u32 s18, s18, s19
    s_add_u32 s18, s18, 0x%x
    s_movk_i32 s19, 1024
    s_mov_b32 s20, %d
    s_movk_i32 s21, 1024
    s_movk_i32 s22, 2048
    v_lshlrev_b32 v11, 2, v9
    v_lshl_add_u32 v11, v7, 1, v11
    v_add_u32 v11, v11, v10
    L_rl_go:
    v_mul_lo_u32 v12, v3, s19
    v_lshl_add_u32 v12, v4, 4, v12
    s_lshl_b32 s23, s19, 2
    s_mul_i32 s24, s14, 8704
    v_mul_u32_u24 v13, 272, v3
    v_lshl_add_u32 v13, v4, 4, v13
    v_add_u32 v13, s24, v13
    ''' % (32 * 3584, WS_WGU, 2 * 112 * 2048, WS_WDF, 112 * 2048))
    for i in range(8):
        k('global_load_dwordx4 v[%d:%d], v12, s[8:9]' % (16 + 4 * i, 19 + 4 * i))
        if i < 7: k('v_add_u32 v12, s23, v12')
    k('''
    v_lshl_add_u32 v14, v8, 3, v5
    v_mul_u32_u24 v14, 272, v14
    v_lshl_add_u32 v14, v11, 3, v14
    v_add_u32 v14, s24, v14
    v_lshlrev_b32 v15, 4, v1
    v_add_u32 v15, s18, v15
    ''')
    for i in range(8):
        k('s_waitcnt vmcnt(%d)' % (7 - i))
        k('ds_write_b128 v13, v[%d:%d] offset:%d' % (16 + 4 * i, 19 + 4 * i, 1088 * i))
    k('s_waitcnt lgkmcnt(0)')
    for cb in range(4):
        for kh in range(2):
            f = 2 * cb + kh
            for h in range(2):
                k('ds_read_b64_tr_b16 v[%d:%d], v14 offset:%d' % (48 + 4 * f + 2 * h, 49 + 4 * f + 2 * h, (16 * kh + 4 * h) * 272 + 64 * cb))
    k('''
    v_add_u32 v16, s21, v15
    v_add_u32 v17, s20, v15
    v_add_u32 v18, s21, v17
    v_add_u32 v19, s22, v15
    v_add_u32 v20, s22, v16
    v_add_u32 v21, s22, v17
    v_add_u32 v22, s22, v18
    ''')
    addr = {(0, 0): 15, (1, 0): 16, (2, 0): 17, (3, 0): 18, (0, 1): 19, (1, 1): 20, (2, 1): 21, (3, 1): 22}
    for cb in range(4):
        for kh in range(2):
            f = 2 * cb + kh
            k('s_waitcnt lgkmcnt(%d)' % (14 - 2 * f))
            k('global_store_dwordx4 v%d, v[%d:%d], s[6:7]%s' % (addr[(cb, kh)], 48 + 4 * f, 51 + 4 * f, WT))
    k('''
    s_cmp_lg_u32 s95, 0
    s_cbranch_scc1 L_wd_next
    ''')
    k('''
    L_A_p1w:
    s_waitcnt vmcnt(0) lgkmcnt(0)
    s_barrier
    s_cmp_lg_u32 s14, 0
    s_cbranch_scc1 L_A_p1f
    s_lshl_b32 s8, s2, 2
    s_add_u32 s8, s8, 0x%x
    v_mov_b32 v3, s8
    v_mov_b32 v4, 1
    global_store_dword v3, v4, s[6:7] offset:-2048%s
    global_store_dword v3, v4, s[6:7] offset:%d%s
    L_A_p1f:
    ''' % (F1 + 2048, WT, ACK - F1 - 2048, WT))
    ts(3)
    k('''
    s_cmp_lt_u32 s2, 224
    s_cbranch_scc1 L_G1
    ''')
    k('''
    s_sub_u32 s3, s2, 224
    s_mul_i32 s3, s3, 7
    s_add_u32 s3, s3, s14
    s_add_u32 s3, s3, 448
    s_mov_b32 s95, 1
    s_branch L_rl
    L_wd_next:
    s_cmp_eq_u32 s95, 2
    s_cbranch_scc1 L_wd_done
    s_cmp_eq_u32 s14, 3
    s_cbranch_scc1 L_wd_done
    s_add_u32 s3, s3, 4
    s_mov_b32 s95, 2
    s_waitcnt vmcnt(0)
    s_branch L_rl
    L_wd_done:
    s_waitcnt vmcnt(0) lgkmcnt(0)
    s_barrier
    s_cmp_lg_u32 s14, 0
    s_cbranch_scc1 L_G2
    s_lshl_b32 s8, s2, 2
    s_add_u32 s8, s8, 0x%x
    v_mov_b32 v3, s8
    v_mov_b32 v4, 1
    global_store_dword v3, v4, s[6:7]%s
    s_branch L_G2
    ''' % (F2 - 4 * 224, WT))

    k('''
    L_G1:
    s_mov_b32 s3, s14
    s_and_b32 s4, s2, 3
    s_lshl_b32 s4, s4, 2
    s_bfe_u32 s8, s2, 0x20003
    s_or_b32 s4, s4, s8
    s_bfe_u32 s5, s2, 0x10002
    s_mul_i32 s5, s5, 7
    s_lshr_b32 s8, s2, 5
    s_add_u32 s5, s5, s8
    v_and_b32 v3, 15, v1
    s_lshl_b32 s8, s4, 4
    v_add_u32 v4, s8, v3
    v_lshrrev_b32 v5, 2, v3
    v_and_b32 v6, 3, v3
    v_lshl_add_u32 v5, v6, 3, v5
    s_and_b32 s8, s2, 0xe4
    v_or_b32 v5, s8, v5
    v_and_b32 v6, 16, v1
    v_cmp_eq_u32 vcc, 0, v6
    v_cndmask_b32 v4, v5, v4, vcc
    v_lshlrev_b32 v4, 2, v4
    v_add_u32 v8, 0x%x, v4
    v_lshlrev_b32 v3, 4, v1
    v_and_b32 v4, 1, v2
    v_lshl_add_u32 v4, v4, 12, v3
    v_lshl_add_u32 v5, v2, 12, v3
    s_lshl_b32 s8, s4, 17
    s_lshl_b32 s9, s5, 18
    s_add_u32 s9, s9, 0x%x
    s_lshl_b32 s15, s3, 12
    s_add_u32 s10, s6, s8
    s_addc_u32 s11, s7, 0
    s_add_u32 s12, s6, s9
    s_addc_u32 s13, s7, 0
    v_lshrrev_b32 v7, 1, v2
    v_lshl_add_u32 v7, v7, 12, v3
    v_add_u32 v6, 0x10000, v7
    ''' % (F1, WS_WGU))
    ACC = 128
    for i in range(128): k('v_mov_b32 v%d, 0' % (ACC + i))
    poll('G1_poll', 8, 9)
    ts(4)
    D = NB - 1
    def xr(stage, kh, b): return 48 + 16 * (stage % NB) + 8 * kh + 4 * b
    def dma(stage):
        sb = STG * (stage % NB)
        L = []
        L.append(['s_add_u32 m0, s15, %d' % sb,
                  's_nop 0',
                  'global_load_lds_dwordx4 v5, s[12:13]'])
        L.append(['global_load_lds_dwordx4 v5, s[12:13] offset:1024'])
        L.append(['global_load_lds_dwordx4 v5, s[12:13] offset:2048'])
        L.append(['global_load_lds_dwordx4 v5, s[12:13] offset:3072',
                  's_add_u32 s12, s12, 16384',
                  's_addc_u32 s13, s13, 0'])
        for kh in range(2):
            for b in range(2):
                r = xr(stage, kh, b)
                L.append(['global_load_dwordx4 v[%d:%d], v4, s[10:11] offset:%d' % (r, r + 3, b * 2048 + kh * 1024)])
        L[-1] += ['s_add_u32 s10, s10, 8192', 's_addc_u32 s11, s11, 0']
        return L
    for st in range(D):
        for grp in dma(st):
            for l in grp: k(l)
    def acc(mat, a, b): return ACC + 16 * ((mat * 2 + a) * 2 + b)
    def wf(kh, mat, a): return 16 + 16 * kh + 4 * (mat * 2 + a)
    for s in range(16):
        sb = STG * (s % NB)
        k('s_waitcnt vmcnt(%d)' % (8 * (min(s + D - 1, 15) - s)))
        k('s_barrier')
        if s == 0: ts(5)
        for kh in range(2):
            for mat in range(2):
                for a in range(2):
                    r = wf(kh, mat, a)
                    off = sb + mat * 8192 + a * 2048 + kh * 1024
                    if off >= 65536:
                        k('ds_read_b128 v[%d:%d], v6 offset:%d' % (r, r + 3, off - 65536))
                    else:
                        k('ds_read_b128 v[%d:%d], v7 offset:%d' % (r, r + 3, off))
        DL = dma(s + D) if s + D < 16 else []
        di = 0
        for _ in range(2):
            if di < len(DL):
                for l in DL[di]: k(l)
                di += 1
        for kh in range(2):
            k('s_waitcnt lgkmcnt(%d)' % (4 if kh == 0 else 0))
            for mat in range(2):
                for a in range(2):
                    for b in range(2):
                        A = acc(mat, a, b)
                        k('v_mfma_f32_32x32x16_bf16 v[%d:%d], v[%d:%d], v[%d:%d], v[%d:%d]' % (
                            A, A + 15, wf(kh, mat, a), wf(kh, mat, a) + 3, xr(s, kh, b), xr(s, kh, b) + 3, A, A + 15))
                        if di < len(DL):
                            for l in DL[di]: k(l)
                            di += 1
    ts(6)
    c0 = -2.0 * 1.4426950408889634 * 0.7978845608028654
    c1 = c0 * 0.044715
    k('''
    v_mov_b32 v8, 0x%x
    v_mov_b32 v9, 0x%x
    v_mov_b32 v10, 0x%x
    v_mov_b32 v11, 0x%x
    v_mov_b32 v12, 1.0
    v_mov_b32 v13, 1.0
    s_lshl_b32 s16, s4, 1
    s_and_b32 s17, s3, 1
    s_add_u32 s16, s16, s17
    s_mul_i32 s16, s16, %d
    s_lshl_b32 s17, s5, 3
    s_lshr_b32 s18, s3, 1
    s_lshl_b32 s18, s18, 2
    s_add_u32 s17, s17, s18
    s_lshl_b32 s17, s17, 11
    s_add_u32 s16, s16, s17
    s_add_u32 s16, s16, 0x%x
    v_add_u32 v14, s16, v3
    v_add_u32 v15, 0x1000, v14
    ''' % (f32(c0), f32(c0), f32(c1), f32(c1), 112 * 2048, WS_H))
    def pair(G, U, T, O):
        g, x, e, u = T, T + 2, T + 4, T + 6
        return [
            'v_cvt_pk_bf16_f32 v%d, v%d, v%d' % (x, G, G + 1),
            'v_cvt_pk_bf16_f32 v%d, v%d, v%d' % (u + 1, U, U + 1),
            'v_lshlrev_b32 v%d, 16, v%d' % (g, x),
            'v_and_b32 v%d, 0xffff0000, v%d' % (g + 1, x),
            'v_pk_mul_f32 v[%d:%d], v[%d:%d], v[%d:%d]' % (x, x + 1, g, g + 1, g, g + 1),
            'v_pk_fma_f32 v[%d:%d], v[%d:%d], v[10:11], v[8:9]' % (x, x + 1, x, x + 1),
            'v_pk_mul_f32 v[%d:%d], v[%d:%d], v[%d:%d]' % (x, x + 1, x, x + 1, g, g + 1),
            'v_exp_f32 v%d, v%d' % (e, x),
            'v_exp_f32 v%d, v%d' % (e + 1, x + 1),
            'v_lshlrev_b32 v%d, 16, v%d' % (u, u + 1),
            'v_and_b32 v%d, 0xffff0000, v%d' % (u + 1, u + 1),
            'v_pk_add_f32 v[%d:%d], v[%d:%d], v[12:13]' % (e, e + 1, e, e + 1),
            'v_rcp_f32 v%d, v%d' % (e, e),
            'v_rcp_f32 v%d, v%d' % (e + 1, e + 1),
            'v_pk_mul_f32 v[%d:%d], v[%d:%d], v[%d:%d]' % (x, x + 1, g, g + 1, e, e + 1),
            'v_cvt_pk_bf16_f32 v%d, v%d, v%d' % (e, x, x + 1),
            'v_lshlrev_b32 v%d, 16, v%d' % (x, e),
            'v_and_b32 v%d, 0xffff0000, v%d' % (x + 1, e),
            'v_pk_mul_f32 v[%d:%d], v[%d:%d], v[%d:%d]' % (x, x + 1, x, x + 1, u, u + 1),
            'v_cvt_pk_bf16_f32 v%d, v%d, v%d' % (O, x, x + 1),
        ]
    cnt = 0
    for a in range(2):
        for b in range(2):
            G = acc(0, a, b); U = acc(1, a, b)
            for half in range(2):
                O = 48 + 4 * (cnt & 3)
                cnt += 1
                for l in interleave([pair(G + 8 * half + 2 * p, U + 8 * half + 2 * p, 16 + 8 * p, O + p) for p in range(4)]):
                    k(l)
                k('global_store_dwordx4 v%d, v[%d:%d], s[6:7] offset:%d%s' % (14 + a, O, O + 3, half * 2048 + b * 1024, WT))
    k('''
    s_waitcnt vmcnt(0)
    s_barrier
    s_cmp_lg_u32 s14, 0
    s_cbranch_scc1 L_G2
    s_lshl_b32 s8, s4, 4
    s_add_u32 s8, s8, s5
    s_lshl_b32 s8, s8, 2
    s_add_u32 s8, s8, 0x%x
    v_mov_b32 v3, s8
    v_mov_b32 v4, 1
    global_store_dword v3, v4, s[6:7]%s
    ''' % (FH, WT))

    P = 8; NS = 28; BUF = 40; AC2 = 168
    k('L_G2:')
    ts(7)
    k('''
    s_load_dwordx2 s[4:5], s[0:1], 0
    s_load_dwordx2 s[8:9], s[0:1], 88
    s_mov_b32 s3, s14
    s_lshr_b32 s10, s2, 5
    s_and_b32 s11, s2, 7
    s_lshl_b32 s11, s11, 1
    s_bfe_u32 s12, s2, 0x10003
    s_or_b32 s11, s11, s12
    s_and_b32 s12, s2, 16
    s_or_b32 s11, s11, s12
    s_lshr_b32 s12, s3, 1
    s_and_b32 s13, s3, 1
    s_mul_i32 s14, s3, 28
    s_mul_i32 s15, s11, 112
    s_add_u32 s15, s15, s14
    s_lshl_b32 s15, s15, 11
    s_add_u32 s15, s15, 0x%x
    s_mul_i32 s16, s10, 112
    s_add_u32 s16, s16, s14
    s_lshl_b32 s16, s16, 11
    s_add_u32 s16, s16, 0x%x
    v_lshlrev_b32 v3, 4, v1
    s_lshl_b32 s17, s12, 10
    s_add_u32 s18, s16, s17
    v_add_u32 v4, s18, v3
    v_xor_b32 v5, 0x400, v4
    s_lshl_b32 s17, s13, 10
    s_add_u32 s18, s15, s17
    v_add_u32 v6, s18, v3
    v_xor_b32 v7, 0x400, v6
    ''' % (WS_H, WS_WDF))
    k('''
    v_and_b32 v8, 31, v1
    s_lshl_b32 s17, s11, 6
    s_lshl_b32 s18, s13, 5
    s_add_u32 s17, s17, s18
    v_add_u32 v8, s17, v8
    v_lshrrev_b32 v9, 5, v1
    v_lshlrev_b32 v9, 4, v9
    s_lshl_b32 s17, s10, 6
    s_lshl_b32 s18, s12, 5
    s_add_u32 s17, s17, s18
    v_add_u32 v9, s17, v9
    v_lshlrev_b32 v10, 10, v8
    v_lshl_add_u32 v10, v9, 1, v10
    v_lshlrev_b32 v11, 12, v9
    v_lshl_add_u32 v11, v8, 1, v11
    v_add_u32 v11, 0x%x, v11
    ''' % WS_AOT)
    k('''
    v_min_u32 v12, 13, v1
    s_lshr_b32 s17, s11, 1
    s_lshl_b32 s17, s17, 4
    v_add_u32 v12, s17, v12
    v_lshlrev_b32 v12, 2, v12
    v_add_u32 v12, 0x%x, v12
    v_add_u32 v13, 16, v1
    v_and_b32 v13, 31, v13
    v_lshlrev_b32 v13, 2, v13
    v_add_u32 v13, 0x%x, v13
    v_cmp_gt_u32 vcc, 16, v1
    v_cndmask_b32 v12, v13, v12, vcc
    v_and_b32 v13, 31, v1
    s_lshl_b32 s17, s10, 5
    v_add_u32 v13, s17, v13
    v_lshlrev_b32 v13, 2, v13
    v_add_u32 v13, 0x%x, v13
    s_waitcnt lgkmcnt(0)
    global_load_dwordx4 v[16:19], v10, s[4:5]
    global_load_dwordx4 v[20:23], v10, s[4:5] offset:16
    ''' % (FH, F2, F3))
    for i in range(64): k('v_mov_b32 v%d, 0' % (AC2 + i))
    poll('G2_poll', 12, 14)
    ts(8)
    vq = VQ()
    def loads(s):
        Bf = BUF + 16 * (s % P)
        off = 2048 * (s & 1)
        L = []
        for j, a in enumerate((4, 5, 6, 7)):
            L.append('global_load_dwordx4 v[%d:%d], v%d, s[6:7] offset:%d' % (Bf + 4 * j, Bf + 4 * j + 3, a, off))
        if s & 1:
            for a in (4, 5, 6, 7): L.append('v_add_u32 v%d, 0x1000, v%d' % (a, a))
        return L
    def emit_loads(vq, s, L):
        pass
    for s in range(P - 1):
        for l in loads(s): k(l)
        vq.issue(('d', s), 4)
    def aot_loads():
        for r in range(16):
            k('global_load_ushort v%d, v11, s[6:7]' % (24 + r))
            if r < 15: k('v_add_u32 v11, 0x1000, v11')
    def step(vq, s):
        Bf = BUF + 16 * (s % P)
        wv = vq.wait(('d', s))
        if wv is not None: k('s_waitcnt vmcnt(%d)' % wv)
        L = loads(s + P - 1) if s + P - 1 < NS else []
        li = 0
        for a in range(2):
            for b in range(2):
                A = AC2 + 16 * (2 * a + b)
                k('v_mfma_f32_32x32x16_bf16 v[%d:%d], v[%d:%d], v[%d:%d], v[%d:%d]' % (
                    A, A + 15, Bf + 4 * a, Bf + 4 * a + 3, Bf + 8 + 4 * b, Bf + 8 + 4 * b + 3, A, A + 15))
                for _ in range(2):
                    if li < len(L):
                        k(L[li]); li += 1
        if L: vq.issue(('d', s + P - 1), 4)
    SP, SC = 14, 21
    for s in range(SC):
        step(vq, s)
        if s == SP:
            k('global_load_dword v14, v13, s[6:7]%s' % WT)
            vq.issue('f3')
    k('s_waitcnt vmcnt(%d)' % vq.wait('f3'))
    k('''
    v_cmp_ne_u32 vcc, 1, v14
    s_cbranch_vccnz L_G2_tb
    ''')
    def reduce_w():
        k('''
        s_lshl_b32 s17, s12, 1
        s_or_b32 s17, s17, s13
        ''')
        for sl in range(1, 4):
            k('s_xor_b32 s18, s17, %d' % sl)
            k('s_mul_i32 s18, s18, 12288')
            k('v_add_u32 v%d, s18, v3' % (3 + sl))
            for q in range(4):
                A = AC2 + 16 * sl + 4 * q
                k('ds_write_b128 v%d, v[%d:%d] offset:%d' % (3 + sl, A, A + 3, (sl - 1) * 4096 + 1024 * q))
    va = vq.clone()
    aot_loads(); va.issue('aot', 16)
    for s in range(SC, NS): step(va, s)
    reduce_w()
    k('s_branch L_G2_ep')
    k('L_G2_tb:')
    vb = vq.clone()
    for s in range(SC, NS): step(vb, s)
    reduce_w()
    poll('G2_p3', 13, 14)
    aot_loads()
    k('L_G2_ep:')
    k('''
    s_mul_i32 s18, s17, 12288
    v_add_u32 v12, s18, v3
    s_waitcnt lgkmcnt(0)
    s_barrier
    ''')
    for sl in range(3):
        for q in range(4):
            R = BUF + 16 * sl + 4 * q
            k('ds_read_b128 v[%d:%d], v12 offset:%d' % (R, R + 3, sl * 4096 + 1024 * q))
    k('s_waitcnt vmcnt(0)')
    for r in range(16):
        k('v_lshlrev_b32 v%d, 16, v%d' % (24 + r, 24 + r))
    for i in range(8):
        k('v_lshlrev_b32 v%d, 16, v%d' % (96 + 2 * i, 16 + i))
        k('v_and_b32 v%d, 0xffff0000, v%d' % (97 + 2 * i, 16 + i))
    for r in range(16):
        k('v_add_f32 v%d, v%d, v%d' % (24 + r, 24 + r, 96 + r))
    for i in range(8):
        k('v_cvt_pk_bf16_f32 v%d, v%d, v%d' % (16 + i, 24 + 2 * i, 25 + 2 * i))
    for i in range(8):
        k('v_lshlrev_b32 v%d, 16, v%d' % (24 + 2 * i, 16 + i))
        k('v_and_b32 v%d, 0xffff0000, v%d' % (25 + 2 * i, 16 + i))
    k('s_waitcnt lgkmcnt(0)')
    for r in range(16):
        k('v_add_f32 v%d, v%d, v%d' % (BUF + r, BUF + r, BUF + 16 + r))
        k('v_add_f32 v%d, v%d, v%d' % (AC2 + r, AC2 + r, BUF + 32 + r))
    for r in range(16):
        k('v_add_f32 v%d, v%d, v%d' % (AC2 + r, AC2 + r, BUF + r))
    for i in range(8):
        k('v_cvt_pk_bf16_f32 v%d, v%d, v%d' % (16 + i, AC2 + 2 * i, AC2 + 2 * i + 1))
    for i in range(8):
        k('v_lshlrev_b32 v%d, 16, v%d' % (AC2 + 2 * i, 16 + i))
        k('v_and_b32 v%d, 0xffff0000, v%d' % (AC2 + 2 * i + 1, 16 + i))
    for r in range(16):
        k('v_add_f32 v%d, v%d, v%d' % (24 + r, 24 + r, AC2 + r))
    for i in range(8):
        k('v_cvt_pk_bf16_f32 v%d, v%d, v%d' % (16 + i, 24 + 2 * i, 25 + 2 * i))
    k('''
    global_store_dwordx4 v10, v[16:19], s[8:9]
    global_store_dwordx4 v10, v[20:23], s[8:9] offset:16
    ''')
    tsout()
    k('s_endpgm')

    k('''
    L_B:
    s_setprio %d
    s_sub_u32 s8, s2, 256
    s_and_b32 s3, s8, 7
    s_lshl_b32 s3, s3, 5
    s_lshr_b32 s8, s8, 3
    s_add_u32 s3, s3, s8
    s_load_dwordx4 s[8:11], s[0:1], 8
    s_load_dwordx4 s[20:23], s[0:1], 24
    s_load_dwordx4 s[16:19], s[0:1], 40
    v_and_b32 v3, 31, v1
    v_lshl_add_u32 v3, v2, 5, v3
    v_lshlrev_b32 v12, 4, v3
    s_lshl_b32 s24, s3, 8
    v_add_u32 v3, s24, v3
    v_lshlrev_b32 v3, 1, v3
    s_lshl_b32 s24, s3, 2
    v_mov_b32 v4, s24
    s_waitcnt lgkmcnt(0)
    global_load_ushort v5, v3, s[8:9]
    global_load_ushort v6, v3, s[10:11]
    global_load_ushort v7, v3, s[20:21]
    global_load_ushort v8, v3, s[22:23]
    global_load_ushort v9, v4, s[16:17]
    global_load_ushort v140, v3, s[8:9] offset:256
    global_load_ushort v141, v3, s[10:11] offset:256
    global_load_ushort v142, v3, s[20:21] offset:256
    global_load_ushort v143, v3, s[22:23] offset:256
    global_load_ushort v144, v4, s[16:17] offset:2
    global_load_dword v145, v4, s[18:19]
    global_load_dword v120, v121, s[6:7]%s
    ''' % (PRIO_B, WT))
    k('''
    s_cmp_lg_u32 s2, 511
    s_cbranch_scc1 L_B_nc
    s_cmp_lg_u32 s14, 0
    s_cbranch_scc1 L_B_nc
    s_setprio 3
    v_lshlrev_b32 v16, 4, v1
    v_add_u32 v16, 0x%x, v16
    v_mov_b32 v20, 0
    v_mov_b32 v21, 0
    v_mov_b32 v22, 0
    v_mov_b32 v23, 0
    v_add_u32 v17, 0x1000, v16
    global_store_dwordx4 v16, v[20:23], s[6:7]%s
    global_store_dwordx4 v16, v[20:23], s[6:7] offset:1024%s
    global_store_dwordx4 v16, v[20:23], s[6:7] offset:2048%s
    global_store_dwordx4 v16, v[20:23], s[6:7] offset:3072%s
    global_store_dwordx4 v17, v[20:23], s[6:7]%s
    global_store_dwordx4 v17, v[20:23], s[6:7] offset:1024%s
    v_lshlrev_b32 v18, 8, v1
    v_add_u32 v18, 0x%x, v18
    global_load_dword v19, v18, s[6:7]%s
    v_mov_b32 v32, 0x%x
    v_mov_b32 v33, 1
    s_mov_b32 s96, 0
    s_waitcnt vmcnt(0)
    global_store_dword v32, v33, s[6:7]%s
    L_co:
    v_add_u32 v19, 1, v19
    global_store_dword v18, v19, s[6:7]%s
    global_load_dwordx4 v[24:27], v17, s[6:7]%s
    global_load_dwordx4 v[28:31], v17, s[6:7] offset:1024%s
    s_waitcnt vmcnt(0)
    v_and_b32 v24, v24, v25
    v_and_b32 v26, v26, v27
    v_and_b32 v28, v28, v29
    v_and_b32 v30, v30, v31
    v_and_b32 v24, v24, v26
    v_and_b32 v28, v28, v30
    v_and_b32 v24, v24, v28
    v_cmp_ne_u32 vcc, 1, v24
    s_cbranch_vccz L_co_ok
    s_add_u32 s96, s96, 1
    s_cmp_lt_u32 s96, %d
    s_cbranch_scc1 L_co
    L_co_ok:
    s_setprio %d
    L_B_nc:
    ''' % (CT, WT, WT, WT, WT, WT, WT, HB, WT, ACK + 4 * 511, WT, WT, WT, WT, BOUND, PRIO_B))
    ts(1)
    k('''
    v_and_b32 v11, 15, v1
    v_cvt_f32_u32 v10, v11
    v_cvt_f32_u32 v11, v11
    v_lshrrev_b32 v13, 4, v1
    v_lshlrev_b32 v13, 4, v13
    v_lshl_add_u32 v13, v2, 9, v13
    v_lshlrev_b32 v4, 3, v0
    v_sub_u32 v4, 0x7ff, v4
    ''')
    for e in range(8):
        p = 146 + e
        k('v_subrev_u32 v%d, %d, v4' % (p, e))
        k('v_or_b32 v24, 1, v%d' % p)
        k('v_ffbh_u32 v24, v24')
        k('v_sub_u32 v24, 24, v24')
        k('v_med3_i32 v24, v24, 0, 3')
        k('v_bfe_u32 v25, v%d, v24, 1' % p)
        k('v_bfm_b32 v26, v24, 0')
        k('v_lshl_add_u32 v26, v%d, 1, v26' % p)
        k('v_add_u32 v26, v26, v25')
        k('v_add_u32 v25, 1, v24')
        k('v_lshrrev_b32 v26, v25, v26')
        k('v_lshl_add_u32 v24, v24, 8, v26')
        k('v_lshrrev_b32 v26, 8, v26')
        k('v_lshl_add_u32 v24, v26, 7, v24')
        k('v_lshlrev_b32 v%d, 2, v24' % p)
    k('''
    v_lshlrev_b32 v154, 12, v2
    v_lshl_add_u32 v154, v1, 2, v154
    v_lshlrev_b32 v155, 2, v0
    v_bfe_u32 v25, v0, 4, 2
    v_bfe_u32 v26, v0, 2, 2
    v_and_b32 v27, 3, v0
    v_lshlrev_b32 v156, 10, v2
    v_lshl_add_u32 v156, v25, 6, v156
    v_lshl_add_u32 v156, v26, 8, v156
    v_lshl_add_u32 v156, v27, 4, v156
    v_and_b32 v157, 15, v1
    v_lshlrev_b32 v157, 6, v157
    v_lshlrev_b32 v158, 4, v0
    v_min_u32 v159, 254, v0
    v_lshlrev_b32 v159, 4, v159
    s_mov_b32 s95, 0
    s_waitcnt vmcnt(0)
    L_kg:
    ''')
    for i in range(17): k('v_mov_b32 v%d, 0' % (48 + i))
    k("""
    v_lshlrev_b32 v5, 16, v5
    v_lshlrev_b32 v6, 16, v6
    v_lshlrev_b32 v7, 16, v7
    v_lshlrev_b32 v8, 16, v8
    v_lshlrev_b32 v9, 16, v9
    v_mul_f32 v5, 0x%x, v5
    v_mul_f32 v9, 0x%x, v9
    v_exp_f32 v5, v5
    v_exp_f32 v9, v9
    s_nop 0
    v_cvt_pk_bf16_f32 v5, v5, v9
    v_and_b32 v9, 0xffff0000, v5
    v_lshlrev_b32 v5, 16, v5
    v_mul_f32 v4, v5, v9
    v_mul_f32 v5, v6, v9
    v_mul_f32 v6, v7, v9
    v_mul_f32 v7, v8, v9
    v_mul_f32 v4, 0x%x, v4
    v_mul_f32 v5, 0x%x, v5
    v_mul_f32 v6, 0x46000000, v6
    v_mul_f32 v7, 0x46000000, v7
    ds_write_b128 v12, v[4:7] offset:20480
    s_waitcnt lgkmcnt(0)
    """ % (LOG2E, LOG2E, LOG2E | 0x80000000, INV2PI))
    for g in range(8):
        k('ds_read_b128 v[%d:%d], v13 offset:%d' % (16 + 4 * g, 19 + 4 * g, 20480 + 64 * g))
    X, Y, Pq, T = 76, 78, 80, 82
    def csq(R):
        k('v_pk_mul_f32 v[%d:%d], v[%d:%d], v[%d:%d] op_sel:[0,0] op_sel_hi:[0,1]' % (T, T + 1, R, R + 1, R, R + 1))
        k('v_pk_fma_f32 v[%d:%d], v[%d:%d], v[%d:%d], v[%d:%d] op_sel:[1,1,0] op_sel_hi:[1,0,1] neg_lo:[0,1,0]' % (R, R + 1, R, R + 1, R, R + 1, T, T + 1))
    AS, BS = 84, 100
    for g in range(8):
        Z = 16 + 4 * g
        q = g & 3
        k('s_waitcnt lgkmcnt(%d)' % (7 - g))
        k('v_pk_mul_f32 v[66:67], v[%d:%d], v[10:11]' % (Z, Z + 1))
        k('v_fract_f32 v67, v67')
        k('v_exp_f32 v70, v66')
        k('v_cos_f32 v72, v67')
        k('v_sin_f32 v73, v67')
        k('v_pk_mul_f32 v[%d:%d], v[70:71], v[72:73] op_sel:[0,0] op_sel_hi:[0,1]' % (X, X + 1))
        if int(ENV('DBGX', '0')):
            k('''
            s_nop 4
            v_mul_f32 v68, v%d, v11
            s_nop 4
            v_exp_f32 v69, v68
            ds_read_b128 v[172:175], v13 offset:%d
            s_nop 4
            v_mul_f32 v160, v69, v72
            v_mul_f32 v161, v69, v73
            v_cmp_ne_u32 vcc, v160, v76
            v_cmp_ne_u32 s[40:41], v161, v77
            s_or_b64 vcc, vcc, s[40:41]
            s_waitcnt lgkmcnt(0)
            v_cmp_ne_u32 s[40:41], v172, v%d
            s_or_b64 vcc, vcc, s[40:41]
            s_mov_b32 s42, 0xb0000000
            v_cmp_lt_f32 s[40:41], s42, v%d
            s_or_b64 vcc, vcc, s[40:41]
            s_cbranch_vccz L_dbx%d
            s_lshl_b32 s40, s2, 14
            s_add_u32 s40, s40, 0x3800000
            v_lshlrev_b32 v162, 6, v0
            v_add_u32 v162, s40, v162
            v_mov_b32 v164, %d
            v_mov_b32 v165, v66
            v_mov_b32 v166, v70
            v_mov_b32 v167, v68
            v_mov_b32 v168, v69
            v_mov_b32 v169, v%d
            v_mov_b32 v170, v76
            v_mov_b32 v171, v160
            v_mov_b32 v176, v67
            v_mov_b32 v177, v72
            v_mov_b32 v178, v73
            v_mov_b32 v179, v140
            global_store_dwordx4 v162, v[164:167], s[6:7]
            global_store_dwordx4 v162, v[168:171], s[6:7] offset:16
            global_store_dwordx4 v162, v[172:175], s[6:7] offset:32
            global_store_dwordx4 v162, v[176:179], s[6:7] offset:48
            L_dbx%d:
            ''' % (Z, 20480 + 64 * g, Z, Z, g, 0x1230 + g, Z, g))
        for b in range(4):
            k('v_cvt_pk_f16_f32 v%d, v%d, v%d' % (BS + 4 * b + q, X, X + 1))
            csq(X)
        for b in range(4):
            Pb = Pq
            k('v_pk_mul_f32 v[%d:%d], v[%d:%d], v[%d:%d] op_sel:[0,0] op_sel_hi:[0,1] neg_hi:[1,0]' % (Pb, Pb + 1, Z + 2, Z + 3, X, X + 1))
            k('v_pk_fma_f32 v[%d:%d], v[%d:%d], v[%d:%d], v[%d:%d] op_sel:[1,1,0] op_sel_hi:[1,0,1] neg_lo:[0,1,0] neg_hi:[0,1,0]' % (Pb, Pb + 1, Z + 2, Z + 3, X, X + 1, Pb, Pb + 1))
            csq(X)
            k('v_cvt_pk_f16_f32 v%d, v%d, v%d' % (AS + 4 * b + q, Pb, Pb + 1))
        k('v_fma_f32 v64, v%d, v%d, v64' % (Z + 2, X))
        k('v_fma_f32 v64, -v%d, v%d, v64' % (Z + 3, X + 1))
        if q == 3:
            for b in range(4):
                A = 48 + 4 * b
                k('v_mfma_f32_16x16x32_f16 v[%d:%d], v[%d:%d], v[%d:%d], v[%d:%d]' % (A, A + 3, AS + 4 * b, AS + 4 * b + 3, BS + 4 * b, BS + 4 * b + 3, A, A + 3))
    for r in range(16):
        k('ds_write_b32 v154, v%d offset:%d' % (48 + r, 256 * r))
    k("""
    ds_write_b32 v155, v64 offset:22528
    s_waitcnt lgkmcnt(0)
    s_barrier
    ds_read_b32 v32, v157 offset:%d
    ds_read_b128 v[16:19], v158
    ds_read_b128 v[20:23], v158 offset:4096
    ds_read_b128 v[24:27], v158 offset:8192
    ds_read_b128 v[28:31], v158 offset:12288
    s_waitcnt lgkmcnt(0)
    """ % (22528 + 32))
    for i in range(4):
        k('v_add_f32 v%d, v%d, v%d' % (16 + i, 16 + i, 20 + i))
        k('v_add_f32 v%d, v%d, v%d' % (24 + i, 24 + i, 28 + i))
    for i in range(4):
        k('v_add_f32 v%d, v%d, v%d' % (16 + i, 16 + i, 24 + i))
    src, dst = 32, 33
    for r in (8, 4, 2, 1):
        k('v_add_f32_dpp v%d, v%d, v%d row_ror:%d row_mask:0xf bank_mask:0xf' % (dst, src, src, r))
        src, dst = dst, src
    k("""
    ds_write_b128 v156, v[16:19] offset:16384
    v_mov_b32 v6, 0
    ds_write_b32 v6, v%d offset:%d
    s_waitcnt lgkmcnt(0)
    s_barrier
    """ % (src, 16384 + 4 * (1024 + 128)))
    for e in range(8):
        k('ds_read_b32 v%d, v%d offset:16384' % (32 + e, 146 + e))
    k('s_waitcnt lgkmcnt(0)')
    for m in range(8):
        k('v_mul_f32 v%d, 0x39800000, v%d' % (32 + m, 32 + m))
    for m in range(4):
        k('v_cvt_pk_bf16_f32 v%d, v%d, v%d' % (124 + m, 32 + 2 * m, 33 + 2 * m))
    k('v_add_u32 v3, %d, v158' % EXO)
    k('v_add_u32 v4, %d, v159' % EXO)
    k('ds_write_b128 v3, v[124:127]')
    k('''
    s_cmp_lg_u32 s95, 0
    s_cbranch_scc1 L_B_hs_skip
    s_cmp_lg_u32 s14, 0
    s_cbranch_scc1 L_B_hs_skip
    s_cmp_eq_u32 s2, 511
    s_cbranch_scc1 L_B_hs_skip
    ''')
    handshake('B_hs')
    k('''
    s_lshl_b32 s8, s2, 2
    s_add_u32 s8, s8, 0x%x
    v_mov_b32 v5, s8
    v_mov_b32 v6, 1
    global_store_dword v5, v6, s[6:7]%s
    L_B_hs_skip:
    s_waitcnt lgkmcnt(0)
    s_barrier
    ds_read_b128 v[128:131], v4 offset:16
    v_cmp_eq_u32 vcc, 255, v0
    s_waitcnt lgkmcnt(0)
    v_cndmask_b32 v128, v128, 0, vcc
    v_cndmask_b32 v129, v129, 0, vcc
    v_cndmask_b32 v130, v130, 0, vcc
    v_cndmask_b32 v131, v131, 0, vcc
    s_cmp_lg_u32 s95, 0
    s_cbranch_scc1 L_kg_done
    ''' % (ACK, WT))
    for i in range(8): k('v_mov_b32 v%d, v%d' % (132 + i, 124 + i))
    for i in range(5): k('v_mov_b32 v%d, v%d' % (5 + i, 140 + i))
    k('''
    s_mov_b32 s95, 1
    s_branch L_kg
    L_kg_done:
    ''')
    ts(2)
    if int(ENV('DBGK', '0')):
        k('''
        s_mul_i32 s8, s3, 8320
        s_add_u32 s8, s8, 0x400000
        v_add_u32 v3, s8, v158
        v_add_u32 v4, 4160, v3
        global_store_dwordx4 v3, v[132:135], s[6:7]
        global_store_dwordx4 v4, v[124:127], s[6:7]
        s_waitcnt vmcnt(0)
        ''')
    KR = (132, 124)
    k('''
    s_lshl_b32 s9, s3, 13
    s_add_u32 s9, s9, 0x%x
    s_lshl_b32 s10, s3, 4
    s_add_u32 s10, s10, 0x%x
    v_lshlrev_b32 v3, 4, v0
    v_lshlrev_b32 v41, 13, v0
    v_add_u32 v41, s10, v41
    v_add_u32 v42, 0x1000, v41
    v_add_u32 v6, s9, v3
    v_add_u32 v43, 0x1000, v6
    v_mov_b32 v40, v145
    v_lshlrev_b32 v4, 4, v1
    v_add_u32 v4, 0x%x, v4
    v_mov_b32 v44, 0
    v_mov_b32 v45, 0
    v_mov_b32 v46, 0
    v_mov_b32 v47, 0
    v_add_u32 v5, %d, v3
    v_mul_u32_u24 v8, %d, v0
    v_cmp_gt_u32 vcc, 8, v0
    s_and_saveexec_b64 s[12:13], vcc
    ds_write_b128 v8, v[44:47] offset:4096
    ds_write_b128 v8, v[44:47] offset:%d
    s_mov_b64 exec, s[12:13]
    v_cmp_gt_u32 vcc, 32, v0
    s_and_saveexec_b64 s[12:13], vcc
    ds_write_b128 v3, v[44:47] offset:%d
    ds_write_b128 v5, v[44:47] offset:%d
    s_mov_b64 exec, s[12:13]
    ''' % (WS_AOT, WS_XT, F1, AB, CP, AB + 4096, XB, XB))
    k('''
    v_lshrrev_b32 v9, 4, v1
    v_and_b32 v10, 15, v1
    v_lshrrev_b32 v11, 3, v10
    v_and_b32 v12, 7, v10
    v_mul_u32_u24 v12, %d, v12
    v_sub_u32 v13, v9, v11
    v_lshlrev_b32 v13, 4, v13
    v_add_u32 v12, v12, v13
    v_lshlrev_b32 v13, 7, v2
    v_sub_u32 v12, v12, v13
    v_add_u32 v12, %d, v12
    v_lshlrev_b32 v14, 5, v10
    v_lshl_add_u32 v14, v9, 4, v14
    v_sub_u32 v14, v14, v13
    v_add_u32 v14, %d, v14
    v_lshlrev_b32 v15, 6, v10
    v_lshl_add_u32 v15, v9, 4, v15
    v_lshl_add_u32 v15, v2, 13, v15
    v_add_u32 v10, %d, v12
    v_add_u32 v11, %d, v14
    v_lshlrev_b32 v9, 5, v0
    ''' % (CP, 4080 - 32 * 3 - 3584, XB + 512 - 32 * 3, AB, AB))
    for i in range(64): k('v_mov_b32 v%d, 0' % (192 + i))
    for ch in range(2):
        K0 = KR[ch]
        T_ = 48 + 18 * ch
        base = 3 if ch == 0 else 5
        for kk in range(6):
            k('v_alignbit_b32 v%d, v%d, v%d, 16' % (T_ + kk, K0 + 1 + kk, K0 + kk))
            k('v_alignbit_b32 v%d, v%d, v%d, 16' % (T_ + 6 + kk, K0 + 2 + kk, K0 + 1 + kk))
            k('v_mov_b32 v%d, v%d' % (T_ + 12 + kk, K0 + 1 + kk))
        for r in range(8):
            sh = 7 - r
            src = {0: K0, 2: T_ + 12, 4: K0 + 2, 6: T_ + 14, 1: T_, 3: T_ + 6, 5: T_ + 2, 7: T_ + 8}[sh]
            k('ds_write_b128 v%d, v[%d:%d] offset:%d' % (base, src, src + 3, r * CP))
    ts(3)
    poll('B_poll', 4, 16, wide=True)
    ts(4)
    k('''
    global_load_dwordx4 v[24:27], v41, s[6:7]
    global_load_dwordx4 v[36:39], v42, s[6:7]
    s_waitcnt vmcnt(0)
    v_mov_b32 v28, v26
    v_mov_b32 v29, v27
    v_mov_b32 v26, v36
    v_mov_b32 v27, v37
    v_mov_b32 v36, v28
    v_mov_b32 v37, v29
    ds_write_b128 v3, v[24:27] offset:%d
    ds_write_b128 v5, v[36:39] offset:%d
    s_waitcnt lgkmcnt(0)
    s_barrier
    ''' % (XB + 512, XB + 512))
    ts(5)
    def af(set_, m): return 64 + 64 * set_ + 4 * m
    def bf(set_, dl): return 64 + 64 * set_ + 32 + 4 * dl
    def reads(ch, set_):
        ex = 64 if set_ == 0 else 0
        ra, rb = (12, 14) if ch == 0 else (10, 11)
        for m in range(8):
            k('ds_read_b128 v[%d:%d], v%d offset:%d' % (af(set_, m), af(set_, m) + 3, ra, 512 * (7 - m) + ex))
            k('ds_read_b128 v[%d:%d], v%d offset:%d' % (bf(set_, m), bf(set_, m) + 3, rb, 512 * m + ex))
    def mm(ch, set_):
        for m in range(8):
            for n in range(m, 8):
                A = 192 + 32 * ch + 4 * n
                k('v_mfma_f32_16x16x32_bf16 v[%d:%d], v[%d:%d], v[%d:%d], v[%d:%d]' % (
                    A, A + 3, af(set_, m), af(set_, m) + 3, bf(set_, n - m), bf(set_, n - m) + 3, A, A + 3))
    reads(0, 0)
    k('s_waitcnt lgkmcnt(0)')
    reads(0, 1)
    mm(0, 0)
    k('s_waitcnt lgkmcnt(0)')
    reads(1, 0)
    mm(0, 1)
    k('s_waitcnt lgkmcnt(0)')
    reads(1, 1)
    mm(1, 0)
    k('s_waitcnt lgkmcnt(0)')
    k('s_barrier')
    mm(1, 1)
    ts(6)
    k('v_add_u32 v13, %d, v15' % AB)
    for ch in range(2):
        for n in range(8):
            A = 192 + 32 * ch + 4 * n
            k('ds_write_b128 v%d, v[%d:%d] offset:%d' % (15 if ch == 0 else 13, A, A + 3, 1024 * n))
    k('''
    v_add_u32 v13, %d, v9
    v_and_b32 v41, 0xffff0000, v40
    v_lshlrev_b32 v40, 16, v40
    s_waitcnt lgkmcnt(0)
    s_barrier
    ''' % AB)
    for ch in range(2):
        for w in range(4):
            for hf in range(2):
                r = 64 + 32 * ch + 8 * w + 4 * hf
                k('ds_read_b128 v[%d:%d], v%d offset:%d' % (r, r + 3, 9 if ch == 0 else 13, 8192 * w + 16 * hf))
    ts(7)
    for ch in range(2):
        S = 128 + 16 * ch
        Xr = 24 + 12 * ch
        for i in range(4):
            k('v_lshlrev_b32 v%d, 16, v%d' % (S + 2 * i, Xr + i))
            k('v_and_b32 v%d, 0xffff0000, v%d' % (S + 1 + 2 * i, Xr + i))
        for i in range(8): k('v_mul_f32 v%d, v%d, v%d' % (S + i, S + i, 40 + ch))
        for i in range(4): k('v_cvt_pk_bf16_f32 v%d, v%d, v%d' % (S + 8 + i, S + 2 * i, S + 1 + 2 * i))
        for i in range(4):
            k('v_lshlrev_b32 v%d, 16, v%d' % (S + 2 * i, S + 8 + i))
            k('v_and_b32 v%d, 0xffff0000, v%d' % (S + 1 + 2 * i, S + 8 + i))
    for ch in range(2):
        S = 128 + 16 * ch
        R = 64 + 32 * ch
        k('s_waitcnt lgkmcnt(%d)' % (8 if ch == 0 else 0))
        for i in range(8):
            k('v_add_f32 v%d, v%d, v%d' % (R + i, R + i, R + 8 + i))
            k('v_add_f32 v%d, v%d, v%d' % (R + 16 + i, R + 16 + i, R + 24 + i))
        for i in range(8): k('v_add_f32 v%d, v%d, v%d' % (R + i, R + i, R + 16 + i))
        for i in range(4): k('v_cvt_pk_bf16_f32 v%d, v%d, v%d' % (S + 8 + i, R + 2 * i, R + 1 + 2 * i))
        for i in range(4):
            k('v_lshlrev_b32 v%d, 16, v%d' % (R + 2 * i, S + 8 + i))
            k('v_and_b32 v%d, 0xffff0000, v%d' % (R + 1 + 2 * i, S + 8 + i))
        for i in range(8): k('v_add_f32 v%d, v%d, v%d' % (R + i, R + i, S + i))
        for i in range(4): k('v_cvt_pk_bf16_f32 v%d, v%d, v%d' % (S + 8 + i, R + 2 * i, R + 1 + 2 * i))
        k('global_store_dwordx4 v%d, v[%d:%d], s[6:7]%s' % (6 if ch == 0 else 43, S + 8, S + 11, WT))
    k('''
    s_waitcnt vmcnt(0)
    s_barrier
    s_cmp_lg_u32 s14, 0
    s_cbranch_scc1 L_B_end
    s_lshl_b32 s8, s3, 2
    s_add_u32 s8, s8, 0x%x
    v_mov_b32 v3, s8
    v_mov_b32 v4, 1
    global_store_dword v3, v4, s[6:7]%s
    L_B_end:
    ''' % (F3, WT))
    ts(8)
    tsout()
    k('''
    L_end:
    s_endpgm
    ''')
    return (k, 256, 0, 512, LDS)

if __name__ == '__main__':
    import sys
    HDR = open('parallel_sum__ssm_conv_s4d__glu_gated_geglu__prompt.s.ref').read().split('; Override launch')[0]
    kernels = [build()]
    out = [HDR.rstrip('\n')]
    for (k, v, a, g, lds) in kernels:
        out.append('; @launch kernel=%s grid=(%d,1,1) block=(256,1,1) lds=%d' % (k.name, g, lds))
    out.append('.amdgcn_target "amdgcn-amd-amdhsa--gfx950"')
    out.append('.text')
    for (k, v, a, g, lds) in kernels:
        out.append(kernel_text(k, v))
    out.append('.section .rodata,"a"')
    for (k, v, a, g, lds) in kernels:
        out.append('.p2align 6')
        out.append(kd_text(k.name, v, a))
    dst = sys.argv[1]
    open(dst, 'w').write('\n'.join(out) + '\n')
    print('wrote', dst)
```

```python
from asmlib import *
import os, struct

def f32(x): return struct.unpack('<I', struct.pack('<f', x))[0]
ENV = lambda n, d: os.environ.get(n, d)
TS = int(ENV('TS', '0'))
WT = ' sc0 sc1'

WS_XF = 0
WS_XT = 0x200000
WS_AOT = 0xA00000
WS_H = 0xC00000
WS_WGU = 0x1400000
WS_WDF = 0x1800000
CT = 0x2000000
F1, F2, FH, F3, ACK = CT, CT + 0x400, CT + 0x800, CT + 0xC00, CT + 0x1000
HB = CT + 0x10000
LOG2E = 0x3fb8aa3b
INV2PI = 0x3e22f983
BOUND = 1 << 17
LDS = 81920
PRIO_A = int(ENV('PRIO_A', '3'))
PRIO_B = int(ENV('PRIO_B', '0'))

CP = 4176
XB = 8 * CP
AB = 38912
EXO = 77824
STG = 16384
NB = 5

class VQ:
    def __init__(self): self.q = []
    def clone(self):
        c = VQ(); c.q = list(self.q); return c
    def issue(self, tag, n=1): self.q += [tag] * n
    def wait(self, tag):
        idx = [i for i, t in enumerate(self.q) if t == tag]
        if not idx: return None
        n = len(self.q) - 1 - idx[-1]
        self.q = self.q[idx[-1] + 1:]
        return n

def interleave(lists):
    out = []
    n = max(len(l) for l in lists)
    for i in range(n):
        for l in lists:
            if i < len(l): out.append(l[i])
    return out

def build():
    k = Kernel('fused_kernel')
    nst = [0]
    def ts(i):
        if TS: k('s_memrealtime s[%d:%d]' % (60 + 2 * i, 61 + 2 * i))
    def tsout():
        if not TS: return
        k('s_waitcnt vmcnt(0)')
        ts(9)
        k('''
        s_waitcnt lgkmcnt(0)
        v_lshrrev_b32 v1, 6, v0
        v_readfirstlane_b32 s3, v1
        s_getreg_b32 s58, hwreg(HW_REG_HW_ID)
        s_getreg_b32 s59, hwreg(HW_REG_XCC_ID)
        ''')
        for i in range(10): k('v_mov_b32 v%d, s%d' % (16 + i, 60 + 2 * i))
        k('''
        v_mov_b32 v26, s58
        v_mov_b32 v27, s59
        s_lshl_b32 s16, s2, 8
        s_lshl_b32 s17, s3, 6
        s_add_u32 s16, s16, s17
        s_add_u32 s16, s16, 0x3400000
        v_mov_b32 v28, s16
        global_store_dwordx4 v28, v[16:19], s[6:7]
        global_store_dwordx4 v28, v[20:23], s[6:7] offset:16
        global_store_dwordx4 v28, v[24:27], s[6:7] offset:32
        ''')
    def poll(name, va, vd, wide=False):
        k('s_mov_b32 s96, 0')
        k('L_%s:' % name)
        if wide:
            k('global_load_dwordx4 v[%d:%d], v%d, s[6:7]%s' % (vd, vd + 3, va, WT))
            k('s_waitcnt vmcnt(0)')
            k('v_and_b32 v%d, v%d, v%d' % (vd, vd, vd + 1))
            k('v_and_b32 v%d, v%d, v%d' % (vd + 2, vd + 2, vd + 3))
            k('v_and_b32 v%d, v%d, v%d' % (vd, vd, vd + 2))
        else:
            k('global_load_dword v%d, v%d, s[6:7]%s' % (vd, va, WT))
            k('s_waitcnt vmcnt(0)')
        k('''
        v_cmp_ne_u32 vcc, 1, v%d
        s_cbranch_vccz L_%s_ok
        s_add_u32 s96, s96, 1
        s_cmp_lt_u32 s96, %d
        s_cbranch_scc0 L_%s_ok
        s_sleep 2
        s_branch L_%s
        L_%s_ok:
        ''' % (vd, name, BOUND, name, name, name))
    def handshake(name):
        k('s_mov_b32 s96, 0')
        k('L_%s:' % name)
        k('''
        global_load_dword v122, v121, s[6:7]%s
        s_waitcnt vmcnt(0)
        v_cmp_ne_u32 vcc, v122, v120
        s_cbranch_vccnz L_%s_ok
        s_add_u32 s96, s96, 1
        s_cmp_lt_u32 s96, %d
        s_cbranch_scc0 L_%s_ok
        s_sleep 1
        s_branch L_%s
        L_%s_ok:
        ''' % (WT, name, BOUND, name, name, name))

    ts(0)
    k('''
    s_cmp_ge_u32 s2, 512
    s_cbranch_scc1 L_end
    s_load_dwordx2 s[4:5], s[0:1], 0
    s_load_dwordx2 s[6:7], s[0:1], 104
    s_add_u32 s2, s2, 511
    s_and_b32 s2, s2, 511
    v_and_b32 v1, 63, v0
    v_lshrrev_b32 v2, 6, v0
    v_readfirstlane_b32 s14, v2
    s_and_b32 s8, s2, 63
    s_lshl_b32 s8, s8, 8
    s_add_u32 s8, s8, 0x%x
    v_mov_b32 v121, s8
    s_cmp_ge_u32 s2, 256
    s_cbranch_scc1 L_B
    s_setprio %d
    s_cmp_ge_u32 s14, 2
    s_cbranch_scc1 L_A_rl
    ''' % (HB, PRIO_A))
    k('''
    v_and_b32 v3, 15, v1
    v_lshrrev_b32 v4, 4, v1
    v_lshl_add_u32 v5, v2, 2, v4
    s_lshl_b32 s8, s2, 13
    v_lshlrev_b32 v6, 10, v5
    v_lshl_add_u32 v6, v3, 6, v6
    v_add_u32 v6, s8, v6
    v_mul_u32_u24 v7, 0x440, v5
    v_lshl_add_u32 v7, v3, 6, v7
    s_waitcnt lgkmcnt(0)
    ''')
    B = 16
    for c in range(4):
        k('global_load_dwordx4 v[%d:%d], v6, s[4:5] offset:%d' % (B + 4 * c, B + 3 + 4 * c, 16 * c))
    k('global_load_dword v120, v121, s[6:7]%s' % WT)
    k('''
    s_lshr_b32 s8, s2, 4
    s_lshl_b32 s8, s8, 17
    s_bfe_u32 s9, s2, 0x20002
    s_lshl_b32 s9, s9, 11
    s_add_u32 s8, s8, s9
    s_and_b32 s9, s2, 3
    s_lshl_b32 s9, s9, 7
    s_add_u32 s8, s8, s9
    v_lshlrev_b32 v13, 13, v3
    v_lshl_add_u32 v13, v5, 4, v13
    v_add_u32 v13, s8, v13
    v_lshrrev_b32 v9, 2, v1
    v_and_b32 v9, 3, v9
    v_lshl_add_u32 v9, v2, 2, v9
    v_mul_u32_u24 v9, 0x440, v9
    v_and_b32 v10, 3, v1
    v_lshl_add_u32 v9, v10, 3, v9
    v_lshl_add_u32 v9, v4, 5, v9
    s_lshl_b32 s8, s2, 13
    s_lshl_b32 s9, s14, 12
    s_add_u32 s8, s8, s9
    s_add_u32 s8, s8, 0x%x
    v_lshlrev_b32 v10, 3, v1
    v_add_u32 v10, s8, v10
    s_waitcnt vmcnt(1)
    ''' % WS_XT)
    ts(1)
    for i in range(16):
        k('v_lshlrev_b32 v%d, 16, v%d' % (48 + 2 * i, B + i))
        k('v_and_b32 v%d, 0xffff0000, v%d' % (49 + 2 * i, B + i))
    PB = 'op_sel:[0,0] op_sel_hi:[1,0]'
    k('v_pk_add_f32 v[80:81], v[48:49], v[50:51]')
    k('v_pk_add_f32 v[82:83], v[52:53], v[54:55]')
    for j in range(2, 8):
        k('v_pk_add_f32 v[80:81], v[80:81], v[%d:%d]' % (48 + 4 * j, 49 + 4 * j))
        k('v_pk_add_f32 v[82:83], v[82:83], v[%d:%d]' % (50 + 4 * j, 51 + 4 * j))
    k('v_pk_add_f32 v[80:81], v[80:81], v[82:83]')
    k('v_add_f32 v80, v80, v81')
    src, dst = 80, 81
    for r in (8, 4, 2, 1):
        k('v_add_f32_dpp v%d, v%d, v%d row_ror:%d row_mask:0xf bank_mask:0xf' % (dst, src, src, r))
        src, dst = dst, src
    k('v_mul_f32 v82, 0x3b000000, v%d' % src)
    for i in range(16):
        t = 88 + 2 * (i & 1)
        k('v_pk_add_f32 v[%d:%d], v[%d:%d], v[82:83] %s neg_lo:[0,1] neg_hi:[0,1]' % (t, t + 1, 48 + 2 * i, 49 + 2 * i, PB))
        if i < 2:
            k('v_pk_mul_f32 v[%d:%d], v[%d:%d], v[%d:%d]' % (84 + 2 * (i & 1), 85 + 2 * (i & 1), t, t + 1, t, t + 1))
        else:
            k('v_pk_fma_f32 v[%d:%d], v[%d:%d], v[%d:%d], v[%d:%d]' % (84 + 2 * (i & 1), 85 + 2 * (i & 1), t, t + 1, t, t + 1, 84 + 2 * (i & 1), 85 + 2 * (i & 1)))
    k('v_pk_add_f32 v[84:85], v[84:85], v[86:87]')
    k('v_add_f32 v84, v84, v85')
    src, dst = 84, 85
    for r in (8, 4, 2, 1):
        k('v_add_f32_dpp v%d, v%d, v%d row_ror:%d row_mask:0xf bank_mask:0xf' % (dst, src, src, r))
        src, dst = dst, src
    k('''
    v_mul_f32 v86, 0x3b000000, v%d
    v_cvt_pk_bf16_f32 v82, v82, v86
    v_and_b32 v86, 0xffff0000, v82
    v_lshlrev_b32 v82, 16, v82
    v_add_f32 v86, 0x3727c5ac, v86
    v_cvt_pk_bf16_f32 v86, v86, v86
    v_lshlrev_b32 v86, 16, v86
    v_sqrt_f32 v86, v86
    s_nop 0
    v_cvt_pk_bf16_f32 v86, v86, v86
    v_lshlrev_b32 v86, 16, v86
    v_rcp_f32 v84, v86
    ''' % src)
    for i in range(16):
        a, b = 48 + 2 * i, 49 + 2 * i
        t = 88 + 4 * (i & 1)
        k('v_pk_add_f32 v[%d:%d], v[%d:%d], v[82:83] %s neg_lo:[0,1] neg_hi:[0,1]' % (a, b, a, b, PB))
        k('v_cvt_pk_bf16_f32 v%d, v%d, v%d' % (t, a, b))
        k('v_lshlrev_b32 v%d, 16, v%d' % (a, t))
        k('v_and_b32 v%d, 0xffff0000, v%d' % (b, t))
        k('v_pk_mul_f32 v[%d:%d], v[%d:%d], v[84:85] %s' % (t, t + 1, a, b, PB))
        k('v_pk_fma_f32 v[%d:%d], v[%d:%d], v[86:87], v[%d:%d] op_sel:[0,0,0] op_sel_hi:[1,0,1] neg_lo:[1,0,0] neg_hi:[1,0,0]' % (t + 2, t + 3, t, t + 1, a, b))
        k('v_pk_fma_f32 v[%d:%d], v[%d:%d], v[84:85], v[%d:%d] op_sel:[0,0,0] op_sel_hi:[1,0,1]' % (t, t + 1, t + 2, t + 3, t, t + 1))
        k('v_cvt_pk_bf16_f32 v%d, v%d, v%d' % (B + i, t, t + 1))
        if (i & 3) == 3:
            c = i >> 2
            k('global_store_dwordx4 v13, v[%d:%d], s[6:7] offset:%d%s' % (B + 4 * c, B + 4 * c + 3, 512 * c, WT))
            k('ds_write_b128 v7, v[%d:%d] offset:%d' % (B + 4 * c, B + 4 * c + 3, 16 * c))
    k('s_waitcnt lgkmcnt(0)')
    for q in range(8):
        k('ds_read_b64_tr_b16 v[%d:%d], v9 offset:%d' % (48 + 2 * q, 49 + 2 * q, 128 * q))
    for q in range(8):
        k('s_waitcnt lgkmcnt(%d)' % (7 - q))
        k('global_store_dwordx2 v10, v[%d:%d], s[6:7] offset:%d%s' % (48 + 2 * q, 49 + 2 * q, 512 * q, WT))
    ts(2)
    k('''
    s_cmp_lg_u32 s14, 0
    s_cbranch_scc1 L_A_p1w
    ''')
    handshake('A_hs')
    k('s_branch L_A_p1w')

    k('''
    L_A_rl:
    s_cmp_ge_u32 s2, 224
    s_cbranch_scc1 L_A_p1w
    s_and_b32 s8, s2, 3
    s_lshl_b32 s8, s8, 2
    s_bfe_u32 s9, s2, 0x20003
    s_or_b32 s8, s8, s9
    s_bfe_u32 s9, s2, 0x10002
    s_mul_i32 s9, s9, 7
    s_lshr_b32 s10, s2, 5
    s_add_u32 s9, s9, s10
    s_lshl_b32 s3, s9, 4
    s_add_u32 s3, s3, s8
    s_and_b32 s8, s14, 1
    s_mul_i32 s8, s8, 224
    s_add_u32 s3, s3, s8
    s_mov_b32 s95, 0
    L_rl:
    s_load_dwordx4 s[8:11], s[0:1], 64
    s_load_dwordx2 s[12:13], s[0:1], 80
    v_lshrrev_b32 v3, 4, v1
    v_and_b32 v4, 15, v1
    v_lshrrev_b32 v5, 2, v1
    v_and_b32 v5, 3, v5
    v_and_b32 v6, 3, v1
    v_and_b32 v7, 1, v3
    v_lshrrev_b32 v8, 1, v3
    v_and_b32 v9, 1, v6
    v_lshrrev_b32 v10, 1, v6
    s_waitcnt lgkmcnt(0)
    s_cmp_ge_u32 s3, 448
    s_cbranch_scc1 L_rl_d
    s_cmp_ge_u32 s3, 224
    s_cselect_b32 s8, s10, s8
    s_cselect_b32 s9, s11, s9
    s_cselect_b32 s15, 1, 0
    s_cselect_b32 s16, 224, 0
    s_sub_u32 s25, s3, s16
    s_lshr_b32 s16, s25, 4
    s_and_b32 s17, s25, 15
    s_mul_i32 s18, s17, %d
    s_lshl_b32 s19, s16, 8
    s_add_u32 s18, s18, s19
    s_add_u32 s8, s8, s18
    s_addc_u32 s9, s9, 0
    s_lshl_b32 s18, s25, 1
    s_add_u32 s18, s18, s15
    s_lshl_b32 s18, s18, 13
    s_add_u32 s18, s18, 0x%x
    s_movk_i32 s19, 3584
    s_movk_i32 s20, 4096
    s_movk_i32 s21, 2048
    s_movk_i32 s22, 1024
    v_lshlrev_b32 v11, 2, v7
    v_lshl_add_u32 v11, v9, 1, v11
    v_add_u32 v11, v11, v10
    s_branch L_rl_go
    L_rl_d:
    s_sub_u32 s25, s3, 448
    s_lshr_b32 s16, s25, 2
    s_and_b32 s17, s25, 3
    s_lshl_b32 s18, s16, 15
    s_lshl_b32 s19, s17, 8
    s_add_u32 s18, s18, s19
    s_add_u32 s8, s12, s18
    s_addc_u32 s9, s13, 0
    s_mul_i32 s18, s17, %d
    s_lshl_b32 s19, s16, 12
    s_add_u32 s18, s18, s19
    s_add_u32 s18, s18, 0x%x
    s_movk_i32 s19, 1024
    s_mov_b32 s20, %d
    s_movk_i32 s21, 1024
    s_movk_i32 s22, 2048
    v_lshlrev_b32 v11, 2, v9
    v_lshl_add_u32 v11, v7, 1, v11
    v_add_u32 v11, v11, v10
    L_rl_go:
    v_mul_lo_u32 v12, v3, s19
    v_lshl_add_u32 v12, v4, 4, v12
    s_lshl_b32 s23, s19, 2
    s_mul_i32 s24, s14, 8704
    v_mul_u32_u24 v13, 272, v3
    v_lshl_add_u32 v13, v4, 4, v13
    v_add_u32 v13, s24, v13
    ''' % (32 * 3584, WS_WGU, 2 * 112 * 2048, WS_WDF, 112 * 2048))
    for i in range(8):
        k('global_load_dwordx4 v[%d:%d], v12, s[8:9]' % (16 + 4 * i, 19 + 4 * i))
        if i < 7: k('v_add_u32 v12, s23, v12')
    k('''
    v_lshl_add_u32 v14, v8, 3, v5
    v_mul_u32_u24 v14, 272, v14
    v_lshl_add_u32 v14, v11, 3, v14
    v_add_u32 v14, s24, v14
    v_lshlrev_b32 v15, 4, v1
    v_add_u32 v15, s18, v15
    ''')
    for i in range(8):
        k('s_waitcnt vmcnt(%d)' % (7 - i))
        k('ds_write_b128 v13, v[%d:%d] offset:%d' % (16 + 4 * i, 19 + 4 * i, 1088 * i))
    k('s_waitcnt lgkmcnt(0)')
    for cb in range(4):
        for kh in range(2):
            f = 2 * cb + kh
            for h in range(2):
                k('ds_read_b64_tr_b16 v[%d:%d], v14 offset:%d' % (48 + 4 * f + 2 * h, 49 + 4 * f + 2 * h, (16 * kh + 4 * h) * 272 + 64 * cb))
    k('''
    v_add_u32 v16, s21, v15
    v_add_u32 v17, s20, v15
    v_add_u32 v18, s21, v17
    v_add_u32 v19, s22, v15
    v_add_u32 v20, s22, v16
    v_add_u32 v21, s22, v17
    v_add_u32 v22, s22, v18
    ''')
    addr = {(0, 0): 15, (1, 0): 16, (2, 0): 17, (3, 0): 18, (0, 1): 19, (1, 1): 20, (2, 1): 21, (3, 1): 22}
    for cb in range(4):
        for kh in range(2):
            f = 2 * cb + kh
            k('s_waitcnt lgkmcnt(%d)' % (14 - 2 * f))
            k('global_store_dwordx4 v%d, v[%d:%d], s[6:7]%s' % (addr[(cb, kh)], 48 + 4 * f, 51 + 4 * f, WT))
    k('''
    s_cmp_lg_u32 s95, 0
    s_cbranch_scc1 L_wd_next
    ''')
    k('''
    L_A_p1w:
    s_waitcnt vmcnt(0) lgkmcnt(0)
    s_barrier
    s_cmp_lg_u32 s14, 0
    s_cbranch_scc1 L_A_p1f
    s_lshl_b32 s8, s2, 2
    s_add_u32 s8, s8, 0x%x
    v_mov_b32 v3, s8
    v_mov_b32 v4, 1
    global_store_dword v3, v4, s[6:7] offset:-2048%s
    global_store_dword v3, v4, s[6:7] offset:%d%s
    L_A_p1f:
    ''' % (F1 + 2048, WT, ACK - F1 - 2048, WT))
    ts(3)
    k('''
    s_cmp_lt_u32 s2, 224
    s_cbranch_scc1 L_G1
    ''')
    k('''
    s_sub_u32 s3, s2, 224
    s_mul_i32 s3, s3, 7
    s_add_u32 s3, s3, s14
    s_add_u32 s3, s3, 448
    s_mov_b32 s95, 1
    s_branch L_rl
    L_wd_next:
    s_cmp_eq_u32 s95, 2
    s_cbranch_scc1 L_wd_done
    s_cmp_eq_u32 s14, 3
    s_cbranch_scc1 L_wd_done
    s_add_u32 s3, s3, 4
    s_mov_b32 s95, 2
    s_waitcnt vmcnt(0)
    s_branch L_rl
    L_wd_done:
    s_waitcnt vmcnt(0) lgkmcnt(0)
    s_barrier
    s_cmp_lg_u32 s14, 0
    s_cbranch_scc1 L_G2
    s_lshl_b32 s8, s2, 2
    s_add_u32 s8, s8, 0x%x
    v_mov_b32 v3, s8
    v_mov_b32 v4, 1
    global_store_dword v3, v4, s[6:7]%s
    s_branch L_G2
    ''' % (F2 - 4 * 224, WT))

    k('''
    L_G1:
    s_mov_b32 s3, s14
    s_and_b32 s4, s2, 3
    s_lshl_b32 s4, s4, 2
    s_bfe_u32 s8, s2, 0x20003
    s_or_b32 s4, s4, s8
    s_bfe_u32 s5, s2, 0x10002
    s_mul_i32 s5, s5, 7
    s_lshr_b32 s8, s2, 5
    s_add_u32 s5, s5, s8
    v_and_b32 v3, 15, v1
    s_lshl_b32 s8, s4, 4
    v_add_u32 v4, s8, v3
    v_lshrrev_b32 v5, 2, v3
    v_and_b32 v6, 3, v3
    v_lshl_add_u32 v5, v6, 3, v5
    s_and_b32 s8, s2, 0xe4
    v_or_b32 v5, s8, v5
    v_and_b32 v6, 16, v1
    v_cmp_eq_u32 vcc, 0, v6
    v_cndmask_b32 v4, v5, v4, vcc
    v_lshlrev_b32 v4, 2, v4
    v_add_u32 v8, 0x%x, v4
    v_lshlrev_b32 v3, 4, v1
    v_and_b32 v4, 1, v2
    v_lshl_add_u32 v4, v4, 12, v3
    v_lshl_add_u32 v5, v2, 12, v3
    s_lshl_b32 s8, s4, 17
    s_lshl_b32 s9, s5, 18
    s_add_u32 s9, s9, 0x%x
    s_lshl_b32 s15, s3, 12
    s_add_u32 s10, s6, s8
    s_addc_u32 s11, s7, 0
    s_add_u32 s12, s6, s9
    s_addc_u32 s13, s7, 0
    v_lshrrev_b32 v7, 1, v2
    v_lshl_add_u32 v7, v7, 12, v3
    v_add_u32 v6, 0x10000, v7
    ''' % (F1, WS_WGU))
    ACC = 128
    for i in range(128): k('v_mov_b32 v%d, 0' % (ACC + i))
    poll('G1_poll', 8, 9)
    ts(4)
    D = NB - 1
    def xr(stage, kh, b): return 48 + 16 * (stage % NB) + 8 * kh + 4 * b
    def dma(stage):
        sb = STG * (stage % NB)
        L = []
        L.append(['s_add_u32 m0, s15, %d' % sb,
                  's_nop 0',
                  'global_load_lds_dwordx4 v5, s[12:13]'])
        L.append(['global_load_lds_dwordx4 v5, s[12:13] offset:1024'])
        L.append(['global_load_lds_dwordx4 v5, s[12:13] offset:2048'])
        L.append(['global_load_lds_dwordx4 v5, s[12:13] offset:3072',
                  's_add_u32 s12, s12, 16384',
                  's_addc_u32 s13, s13, 0'])
        for kh in range(2):
            for b in range(2):
                r = xr(stage, kh, b)
                L.append(['global_load_dwordx4 v[%d:%d], v4, s[10:11] offset:%d' % (r, r + 3, b * 2048 + kh * 1024)])
        L[-1] += ['s_add_u32 s10, s10, 8192', 's_addc_u32 s11, s11, 0']
        return L
    for st in range(D):
        for grp in dma(st):
            for l in grp: k(l)
    T1 = int(ENV('T1', '0'))
    if T1:
        k('''
        s_bfe_u32 s16, s2, 0x20003
        s_lshl_b32 s16, s16, 7
        s_lshl_b32 s17, s3, 15
        s_add_u32 s16, s16, s17
        v_lshlrev_b32 v10, 9, v1
        v_add_u32 v10, s16, v10
        global_load_dword v12, v10, s[12:13]
        s_add_u32 s16, s16, 0x20000
        s_lshr_b32 s17, s2, 5
        s_mul_i32 s18, s3, 448
        s_add_u32 s17, s17, s18
        s_sub_u32 s17, s17, 896
        s_lshl_b32 s17, s17, 7
        s_cmp_lt_u32 s3, 2
        s_cselect_b32 s16, s16, s17
        s_cselect_b32 s17, 4, 7
        s_cselect_b32 s18, -1, %d
        s_cselect_b32 s20, s12, s10
        s_cselect_b32 s21, s13, s11
        s_lshl_b32 s17, s17, 7
        v_mul_u32_u24 v11, s17, v1
        v_add_u32 v11, s16, v11
        v_min_u32 v11, s18, v11
        global_load_dword v13, v11, s[20:21]
        ''' % (767 * 128))
    def acc(mat, a, b): return ACC + 16 * ((mat * 2 + a) * 2 + b)
    def wf(kh, mat, a): return 16 + 16 * kh + 4 * (mat * 2 + a)
    def wreads(s, kh):
        sb = STG * (s % NB)
        for mat in range(2):
            for a in range(2):
                r = wf(kh, mat, a)
                off = sb + mat * 8192 + a * 2048 + kh * 1024
                if off >= 65536:
                    k('ds_read_b128 v[%d:%d], v6 offset:%d' % (r, r + 3, off - 65536))
                else:
                    k('ds_read_b128 v[%d:%d], v7 offset:%d' % (r, r + 3, off))
    def mfmas(s, kh, DL):
        di = 0
        for mat in range(2):
            for a in range(2):
                for b in range(2):
                    A = acc(mat, a, b)
                    k('v_mfma_f32_32x32x16_bf16 v[%d:%d], v[%d:%d], v[%d:%d], v[%d:%d]' % (
                        A, A + 15, wf(kh, mat, a), wf(kh, mat, a) + 3, xr(s, kh, b), xr(s, kh, b) + 3, A, A + 15))
                    if di < len(DL):
                        for l in DL[di]: k(l)
                        di += 1
        assert di == len(DL)
    if int(ENV('G1OLD', '0')):
        for s in range(16):
            sb = STG * (s % NB)
            k('s_waitcnt vmcnt(%d)' % (8 * (min(s + D - 1, 15) - s) + (2 if (T1 and s < D) else 0)))
            k('s_barrier')
            if s == 0: ts(5)
            for kh in range(2):
                for mat in range(2):
                    for a in range(2):
                        r = wf(kh, mat, a)
                        off = sb + mat * 8192 + a * 2048 + kh * 1024
                        if off >= 65536:
                            k('ds_read_b128 v[%d:%d], v6 offset:%d' % (r, r + 3, off - 65536))
                        else:
                            k('ds_read_b128 v[%d:%d], v7 offset:%d' % (r, r + 3, off))
            DL = dma(s + D) if s + D < 16 else []
            di = 0
            for _ in range(2):
                if di < len(DL):
                    for l in DL[di]: k(l)
                    di += 1
            for kh in range(2):
                k('s_waitcnt lgkmcnt(%d)' % (4 if kh == 0 else 0))
                for mat in range(2):
                    for a in range(2):
                        for b in range(2):
                            A = acc(mat, a, b)
                            k('v_mfma_f32_32x32x16_bf16 v[%d:%d], v[%d:%d], v[%d:%d], v[%d:%d]' % (
                                A, A + 15, wf(kh, mat, a), wf(kh, mat, a) + 3, xr(s, kh, b), xr(s, kh, b) + 3, A, A + 15))
                            if di < len(DL):
                                for l in DL[di]: k(l)
                                di += 1

    else:
        k('s_waitcnt vmcnt(%d)' % (8 * (D - 1)))
        k('s_barrier')
        ts(5)
        wreads(0, 0)
        for s in range(16):
            wreads(s, 1)
            k('s_waitcnt lgkmcnt(4)')
            mfmas(s, 0, dma(s + D) if (s + D < 16 and s > 0) else [])
            if s < 15:
                last = min(s + D, 15) if s > 0 else D - 1
                k('s_waitcnt vmcnt(%d) lgkmcnt(0)' % (8 * (last - (s + 1))))
                k('s_barrier')
                wreads(s + 1, 0)
            else:
                k('s_waitcnt lgkmcnt(0)')
            mfmas(s, 1, dma(D) if s == 0 else [])
    ts(6)
    c0 = -2.0 * 1.4426950408889634 * 0.7978845608028654
    c1 = c0 * 0.044715
    k('''
    v_mov_b32 v8, 0x%x
    v_mov_b32 v9, 0x%x
    v_mov_b32 v10, 0x%x
    v_mov_b32 v11, 0x%x
    v_mov_b32 v12, 1.0
    v_mov_b32 v13, 1.0
    s_lshl_b32 s16, s4, 1
    s_and_b32 s17, s3, 1
    s_add_u32 s16, s16, s17
    s_mul_i32 s16, s16, %d
    s_lshl_b32 s17, s5, 3
    s_lshr_b32 s18, s3, 1
    s_lshl_b32 s18, s18, 2
    s_add_u32 s17, s17, s18
    s_lshl_b32 s17, s17, 11
    s_add_u32 s16, s16, s17
    s_add_u32 s16, s16, 0x%x
    v_add_u32 v14, s16, v3
    v_add_u32 v15, 0x1000, v14
    ''' % (f32(c0), f32(c0), f32(c1), f32(c1), 112 * 2048, WS_H))
    def pair(G, U, T, O):
        g, x, e, u = T, T + 2, T + 4, T + 6
        return [
            'v_cvt_pk_bf16_f32 v%d, v%d, v%d' % (x, G, G + 1),
            'v_cvt_pk_bf16_f32 v%d, v%d, v%d' % (u + 1, U, U + 1),
            'v_lshlrev_b32 v%d, 16, v%d' % (g, x),
            'v_and_b32 v%d, 0xffff0000, v%d' % (g + 1, x),
            'v_pk_mul_f32 v[%d:%d], v[%d:%d], v[%d:%d]' % (x, x + 1, g, g + 1, g, g + 1),
            'v_pk_fma_f32 v[%d:%d], v[%d:%d], v[10:11], v[8:9]' % (x, x + 1, x, x + 1),
            'v_pk_mul_f32 v[%d:%d], v[%d:%d], v[%d:%d]' % (x, x + 1, x, x + 1, g, g + 1),
            'v_exp_f32 v%d, v%d' % (e, x),
            'v_exp_f32 v%d, v%d' % (e + 1, x + 1),
            'v_lshlrev_b32 v%d, 16, v%d' % (u, u + 1),
            'v_and_b32 v%d, 0xffff0000, v%d' % (u + 1, u + 1),
            'v_pk_add_f32 v[%d:%d], v[%d:%d], v[12:13]' % (e, e + 1, e, e + 1),
            'v_rcp_f32 v%d, v%d' % (e, e),
            'v_rcp_f32 v%d, v%d' % (e + 1, e + 1),
            'v_pk_mul_f32 v[%d:%d], v[%d:%d], v[%d:%d]' % (x, x + 1, g, g + 1, e, e + 1),
            'v_cvt_pk_bf16_f32 v%d, v%d, v%d' % (e, x, x + 1),
            'v_lshlrev_b32 v%d, 16, v%d' % (x, e),
            'v_and_b32 v%d, 0xffff0000, v%d' % (x + 1, e),
            'v_pk_mul_f32 v[%d:%d], v[%d:%d], v[%d:%d]' % (x, x + 1, x, x + 1, u, u + 1),
            'v_cvt_pk_bf16_f32 v%d, v%d, v%d' % (O, x, x + 1),
        ]
    cnt = 0
    for a in range(2):
        for b in range(2):
            G = acc(0, a, b); U = acc(1, a, b)
            for half in range(2):
                O = 48 + 4 * (cnt & 3)
                cnt += 1
                for l in interleave([pair(G + 8 * half + 2 * p, U + 8 * half + 2 * p, 16 + 8 * p, O + p) for p in range(4)]):
                    k(l)
                k('global_store_dwordx4 v%d, v[%d:%d], s[6:7] offset:%d%s' % (14 + a, O, O + 3, half * 2048 + b * 1024, WT))
    k('''
    s_waitcnt vmcnt(0)
    s_barrier
    s_cmp_lg_u32 s14, 0
    s_cbranch_scc1 L_G2
    s_lshl_b32 s8, s4, 4
    s_add_u32 s8, s8, s5
    s_lshl_b32 s8, s8, 2
    s_add_u32 s8, s8, 0x%x
    v_mov_b32 v3, s8
    v_mov_b32 v4, 1
    global_store_dword v3, v4, s[6:7]%s
    ''' % (FH, WT))

    P = 8; NS = 28; BUF = 40; AC2 = 168
    k('L_G2:')
    ts(7)
    k('''
    s_load_dwordx2 s[4:5], s[0:1], 0
    s_load_dwordx2 s[8:9], s[0:1], 88
    s_mov_b32 s3, s14
    s_lshr_b32 s10, s2, 5
    s_and_b32 s11, s2, 7
    s_lshl_b32 s11, s11, 1
    s_bfe_u32 s12, s2, 0x10003
    s_or_b32 s11, s11, s12
    s_and_b32 s12, s2, 16
    s_or_b32 s11, s11, s12
    s_lshr_b32 s12, s3, 1
    s_and_b32 s13, s3, 1
    s_mul_i32 s14, s3, 28
    s_mul_i32 s15, s11, 112
    s_add_u32 s15, s15, s14
    s_lshl_b32 s15, s15, 11
    s_add_u32 s15, s15, 0x%x
    s_mul_i32 s16, s10, 112
    s_add_u32 s16, s16, s14
    s_lshl_b32 s16, s16, 11
    s_add_u32 s16, s16, 0x%x
    v_lshlrev_b32 v3, 4, v1
    s_lshl_b32 s17, s12, 10
    s_add_u32 s18, s16, s17
    v_add_u32 v4, s18, v3
    v_xor_b32 v5, 0x400, v4
    s_lshl_b32 s17, s13, 10
    s_add_u32 s18, s15, s17
    v_add_u32 v6, s18, v3
    v_xor_b32 v7, 0x400, v6
    ''' % (WS_H, WS_WDF))
    k('''
    v_and_b32 v8, 31, v1
    s_lshl_b32 s17, s11, 6
    s_lshl_b32 s18, s13, 5
    s_add_u32 s17, s17, s18
    v_add_u32 v8, s17, v8
    v_lshrrev_b32 v9, 5, v1
    v_lshlrev_b32 v9, 4, v9
    s_lshl_b32 s17, s10, 6
    s_lshl_b32 s18, s12, 5
    s_add_u32 s17, s17, s18
    v_add_u32 v9, s17, v9
    v_lshlrev_b32 v10, 10, v8
    v_lshl_add_u32 v10, v9, 1, v10
    v_lshlrev_b32 v11, 12, v9
    v_lshl_add_u32 v11, v8, 1, v11
    v_add_u32 v11, 0x%x, v11
    ''' % WS_AOT)
    k('''
    v_min_u32 v12, 13, v1
    s_lshr_b32 s17, s11, 1
    s_lshl_b32 s17, s17, 4
    v_add_u32 v12, s17, v12
    v_lshlrev_b32 v12, 2, v12
    v_add_u32 v12, 0x%x, v12
    v_add_u32 v13, 16, v1
    v_and_b32 v13, 31, v13
    v_lshlrev_b32 v13, 2, v13
    v_add_u32 v13, 0x%x, v13
    v_cmp_gt_u32 vcc, 16, v1
    v_cndmask_b32 v12, v13, v12, vcc
    v_and_b32 v13, 31, v1
    s_lshl_b32 s17, s10, 5
    v_add_u32 v13, s17, v13
    v_lshlrev_b32 v13, 2, v13
    v_add_u32 v13, 0x%x, v13
    s_waitcnt lgkmcnt(0)
    global_load_dwordx4 v[16:19], v10, s[4:5]
    global_load_dwordx4 v[20:23], v10, s[4:5] offset:16
    ''' % (FH, F2, F3))
    for i in range(64): k('v_mov_b32 v%d, 0' % (AC2 + i))
    poll('G2_poll', 12, 14)
    ts(8)
    vq = VQ()
    def loads(s):
        Bf = BUF + 16 * (s % P)
        off = 2048 * (s & 1)
        L = []
        for j, a in enumerate((4, 5, 6, 7)):
            L.append('global_load_dwordx4 v[%d:%d], v%d, s[6:7] offset:%d' % (Bf + 4 * j, Bf + 4 * j + 3, a, off))
        if s & 1:
            for a in (4, 5, 6, 7): L.append('v_add_u32 v%d, 0x1000, v%d' % (a, a))
        return L
    def emit_loads(vq, s, L):
        pass
    for s in range(P - 1):
        for l in loads(s): k(l)
        vq.issue(('d', s), 4)
    T2 = int(ENV('T2', '0'))
    if T2 & 1:
        k('''
        v_min_u32 v232, 41, v1
        v_lshlrev_b32 v232, 10, v232
        s_lshl_b32 s17, s10, 7
        s_add_u32 s17, s17, s15
        s_add_u32 s17, s17, %d
        v_add_u32 v232, s17, v232
        global_load_dword v235, v232, s[6:7]
        ''' % ((P - 1) * 2048))
        vq.issue('t', 1)
    if T2 & 2:
        k('''
        v_lshlrev_b32 v233, 9, v1
        s_bfe_u32 s17, s2, 0x20003
        s_lshl_b32 s17, s17, 7
        s_add_u32 s17, s17, s16
        s_add_u32 s17, s17, %d
        v_add_u32 v233, s17, v233
        v_min_u32 v234, 19, v1
        v_lshlrev_b32 v234, 9, v234
        v_add_u32 v234, s17, v234
        v_add_u32 v234, 0x8000, v234
        global_load_dword v236, v233, s[6:7]
        global_load_dword v237, v234, s[6:7]
        ''' % ((P - 1) * 2048))
        vq.issue('t', 2)
    def aot_loads():
        for r in range(16):
            k('global_load_ushort v%d, v11, s[6:7]' % (24 + r))
            if r < 15: k('v_add_u32 v11, 0x1000, v11')
    def step(vq, s):
        Bf = BUF + 16 * (s % P)
        wv = vq.wait(('d', s))
        if wv is not None: k('s_waitcnt vmcnt(%d)' % wv)
        L = loads(s + P - 1) if s + P - 1 < NS else []
        li = 0
        for a in range(2):
            for b in range(2):
                A = AC2 + 16 * (2 * a + b)
                k('v_mfma_f32_32x32x16_bf16 v[%d:%d], v[%d:%d], v[%d:%d], v[%d:%d]' % (
                    A, A + 15, Bf + 4 * a, Bf + 4 * a + 3, Bf + 8 + 4 * b, Bf + 8 + 4 * b + 3, A, A + 15))
                for _ in range(2):
                    if li < len(L):
                        k(L[li]); li += 1
        if L: vq.issue(('d', s + P - 1), 4)
    SP, SC = 14, 21
    for s in range(SC):
        step(vq, s)
        if s == SP:
            k('global_load_dword v14, v13, s[6:7]%s' % WT)
            vq.issue('f3')
    k('s_waitcnt vmcnt(%d)' % vq.wait('f3'))
    k('''
    v_cmp_ne_u32 vcc, 1, v14
    s_cbranch_vccnz L_G2_tb
    ''')
    def reduce_w():
        k('''
        s_lshl_b32 s17, s12, 1
        s_or_b32 s17, s17, s13
        ''')
        for sl in range(1, 4):
            k('s_xor_b32 s18, s17, %d' % sl)
            k('s_mul_i32 s18, s18, 12288')
            k('v_add_u32 v%d, s18, v3' % (3 + sl))
            for q in range(4):
                A = AC2 + 16 * sl + 4 * q
                k('ds_write_b128 v%d, v[%d:%d] offset:%d' % (3 + sl, A, A + 3, (sl - 1) * 4096 + 1024 * q))
    va = vq.clone()
    aot_loads(); va.issue('aot', 16)
    for s in range(SC, NS): step(va, s)
    reduce_w()
    k('s_branch L_G2_ep')
    k('L_G2_tb:')
    vb = vq.clone()
    for s in range(SC, NS): step(vb, s)
    reduce_w()
    poll('G2_p3', 13, 14)
    aot_loads()
    k('L_G2_ep:')
    k('''
    s_mul_i32 s18, s17, 12288
    v_add_u32 v12, s18, v3
    s_waitcnt lgkmcnt(0)
    s_barrier
    ''')
    for sl in range(3):
        for q in range(4):
            R = BUF + 16 * sl + 4 * q
            k('ds_read_b128 v[%d:%d], v12 offset:%d' % (R, R + 3, sl * 4096 + 1024 * q))
    k('s_waitcnt vmcnt(0)')
    for r in range(16):
        k('v_lshlrev_b32 v%d, 16, v%d' % (24 + r, 24 + r))
    for i in range(8):
        k('v_lshlrev_b32 v%d, 16, v%d' % (96 + 2 * i, 16 + i))
        k('v_and_b32 v%d, 0xffff0000, v%d' % (97 + 2 * i, 16 + i))
    for r in range(16):
        k('v_add_f32 v%d, v%d, v%d' % (24 + r, 24 + r, 96 + r))
    for i in range(8):
        k('v_cvt_pk_bf16_f32 v%d, v%d, v%d' % (16 + i, 24 + 2 * i, 25 + 2 * i))
    for i in range(8):
        k('v_lshlrev_b32 v%d, 16, v%d' % (24 + 2 * i, 16 + i))
        k('v_and_b32 v%d, 0xffff0000, v%d' % (25 + 2 * i, 16 + i))
    k('s_waitcnt lgkmcnt(0)')
    for r in range(16):
        k('v_add_f32 v%d, v%d, v%d' % (BUF + r, BUF + r, BUF + 16 + r))
        k('v_add_f32 v%d, v%d, v%d' % (AC2 + r, AC2 + r, BUF + 32 + r))
    for r in range(16):
        k('v_add_f32 v%d, v%d, v%d' % (AC2 + r, AC2 + r, BUF + r))
    for i in range(8):
        k('v_cvt_pk_bf16_f32 v%d, v%d, v%d' % (16 + i, AC2 + 2 * i, AC2 + 2 * i + 1))
    for i in range(8):
        k('v_lshlrev_b32 v%d, 16, v%d' % (AC2 + 2 * i, 16 + i))
        k('v_and_b32 v%d, 0xffff0000, v%d' % (AC2 + 2 * i + 1, 16 + i))
    for r in range(16):
        k('v_add_f32 v%d, v%d, v%d' % (24 + r, 24 + r, AC2 + r))
    for i in range(8):
        k('v_cvt_pk_bf16_f32 v%d, v%d, v%d' % (16 + i, 24 + 2 * i, 25 + 2 * i))
    k('''
    global_store_dwordx4 v10, v[16:19], s[8:9]
    global_store_dwordx4 v10, v[20:23], s[8:9] offset:16
    ''')
    tsout()
    k('s_endpgm')

    k('''
    L_B:
    s_setprio %d
    s_sub_u32 s8, s2, 256
    s_and_b32 s3, s8, 7
    s_lshl_b32 s3, s3, 5
    s_lshr_b32 s8, s8, 3
    s_add_u32 s3, s3, s8
    s_load_dwordx4 s[8:11], s[0:1], 8
    s_load_dwordx4 s[20:23], s[0:1], 24
    s_load_dwordx4 s[16:19], s[0:1], 40
    v_and_b32 v3, 31, v1
    v_lshl_add_u32 v3, v2, 5, v3
    v_lshlrev_b32 v12, 4, v3
    s_lshl_b32 s24, s3, 8
    v_add_u32 v3, s24, v3
    v_lshlrev_b32 v3, 1, v3
    s_lshl_b32 s24, s3, 2
    v_mov_b32 v4, s24
    s_waitcnt lgkmcnt(0)
    global_load_ushort v5, v3, s[8:9]
    global_load_ushort v6, v3, s[10:11]
    global_load_ushort v7, v3, s[20:21]
    global_load_ushort v8, v3, s[22:23]
    global_load_ushort v9, v4, s[16:17]
    global_load_ushort v140, v3, s[8:9] offset:256
    global_load_ushort v141, v3, s[10:11] offset:256
    global_load_ushort v142, v3, s[20:21] offset:256
    global_load_ushort v143, v3, s[22:23] offset:256
    global_load_ushort v144, v4, s[16:17] offset:2
    global_load_dword v145, v4, s[18:19]
    global_load_dword v120, v121, s[6:7]%s
    ''' % (PRIO_B, WT))
    k('''
    s_mov_b32 s94, 0
    s_cmp_lg_u32 s2, 511
    s_cbranch_scc1 L_B_nc
    s_cmp_lg_u32 s14, 0
    s_cbranch_scc1 L_B_nc
    s_setprio 3
    s_mov_b32 s94, 1
    v_lshlrev_b32 v16, 4, v1
    v_add_u32 v16, 0x%x, v16
    v_mov_b32 v20, 0
    v_mov_b32 v21, 0
    v_mov_b32 v22, 0
    v_mov_b32 v23, 0
    v_add_u32 v182, 0x1000, v16
    global_store_dwordx4 v16, v[20:23], s[6:7]%s
    global_store_dwordx4 v16, v[20:23], s[6:7] offset:1024%s
    global_store_dwordx4 v16, v[20:23], s[6:7] offset:2048%s
    global_store_dwordx4 v16, v[20:23], s[6:7] offset:3072%s
    global_store_dwordx4 v182, v[20:23], s[6:7]%s
    global_store_dwordx4 v182, v[20:23], s[6:7] offset:1024%s
    v_lshlrev_b32 v180, 8, v1
    v_add_u32 v180, 0x%x, v180
    global_load_dword v181, v180, s[6:7]%s
    v_mov_b32 v32, 0x%x
    v_mov_b32 v33, 1
    s_waitcnt vmcnt(0)
    v_add_u32 v181, 1, v181
    global_store_dword v180, v181, s[6:7]%s
    global_store_dword v32, v33, s[6:7]%s
    s_setprio %d
    L_B_nc:
    ''' % (CT, WT, WT, WT, WT, WT, WT, HB, WT, ACK + 4 * 511, WT, WT, PRIO_B))
    nb = [0]
    def beat():
        nb[0] += 1
        k('''
        s_cmp_eq_u32 s94, 0
        s_cbranch_scc1 L_beat%d
        v_add_u32 v181, 1, v181
        global_store_dword v180, v181, s[6:7]%s
        L_beat%d:
        ''' % (nb[0], WT, nb[0]))
    ts(1)
    if int(ENV('NOB', '0')):
        k('''
        s_cmp_lg_u32 s14, 0
        s_cbranch_scc1 L_B_end
        s_cmp_eq_u32 s2, 511
        s_cbranch_scc1 L_nob1
        s_waitcnt vmcnt(0)
        ''')
        handshake('B_hs0')
        k('''
        s_lshl_b32 s8, s2, 2
        s_add_u32 s8, s8, 0x%x
        v_mov_b32 v5, s8
        v_mov_b32 v6, 1
        global_store_dword v5, v6, s[6:7]%s
        L_nob1:
        s_lshl_b32 s8, s3, 2
        s_add_u32 s8, s8, 0x%x
        v_mov_b32 v3, s8
        v_mov_b32 v4, 1
        global_store_dword v3, v4, s[6:7]%s
        s_branch L_B_end
        ''' % (ACK, WT, F3, WT))
    k('''
    v_and_b32 v11, 15, v1
    v_cvt_f32_u32 v10, v11
    v_cvt_f32_u32 v11, v11
    v_lshrrev_b32 v13, 4, v1
    v_lshlrev_b32 v13, 4, v13
    v_lshl_add_u32 v13, v2, 9, v13
    v_lshlrev_b32 v4, 3, v0
    v_sub_u32 v4, 0x7ff, v4
    ''')
    for e in range(8):
        p = 146 + e
        k('v_subrev_u32 v%d, %d, v4' % (p, e))
        k('v_or_b32 v24, 1, v%d' % p)
        k('v_ffbh_u32 v24, v24')
        k('v_sub_u32 v24, 24, v24')
        k('v_med3_i32 v24, v24, 0, 3')
        k('v_bfe_u32 v25, v%d, v24, 1' % p)
        k('v_bfm_b32 v26, v24, 0')
        k('v_lshl_add_u32 v26, v%d, 1, v26' % p)
        k('v_add_u32 v26, v26, v25')
        k('v_add_u32 v25, 1, v24')
        k('v_lshrrev_b32 v26, v25, v26')
        k('v_lshl_add_u32 v24, v24, 8, v26')
        k('v_lshrrev_b32 v26, 8, v26')
        k('v_lshl_add_u32 v24, v26, 7, v24')
        k('v_lshlrev_b32 v%d, 2, v24' % p)
        if e == 3: beat()
    k('''
    v_lshlrev_b32 v154, 12, v2
    v_lshl_add_u32 v154, v1, 2, v154
    v_lshlrev_b32 v155, 2, v0
    v_bfe_u32 v25, v0, 4, 2
    v_bfe_u32 v26, v0, 2, 2
    v_and_b32 v27, 3, v0
    v_lshlrev_b32 v156, 10, v2
    v_lshl_add_u32 v156, v25, 6, v156
    v_lshl_add_u32 v156, v26, 8, v156
    v_lshl_add_u32 v156, v27, 4, v156
    v_and_b32 v157, 15, v1
    v_lshlrev_b32 v157, 6, v157
    v_lshlrev_b32 v158, 4, v0
    v_min_u32 v159, 254, v0
    v_lshlrev_b32 v159, 4, v159
    s_mov_b32 s95, 0
    s_waitcnt vmcnt(0)
    ''')
    beat()
    KTS = int(ENV('KTS', '0'))
    if KTS: ts(3)
    k('L_kg:')
    for i in range(17): k('v_mov_b32 v%d, 0' % (48 + i))
    k("""
    v_lshlrev_b32 v5, 16, v5
    v_lshlrev_b32 v6, 16, v6
    v_lshlrev_b32 v7, 16, v7
    v_lshlrev_b32 v8, 16, v8
    v_lshlrev_b32 v9, 16, v9
    v_mul_f32 v5, 0x%x, v5
    v_mul_f32 v9, 0x%x, v9
    v_exp_f32 v5, v5
    v_exp_f32 v9, v9
    s_nop 0
    v_cvt_pk_bf16_f32 v5, v5, v9
    v_and_b32 v9, 0xffff0000, v5
    v_lshlrev_b32 v5, 16, v5
    v_mul_f32 v4, v5, v9
    v_mul_f32 v5, v6, v9
    v_mul_f32 v6, v7, v9
    v_mul_f32 v7, v8, v9
    v_mul_f32 v4, 0x%x, v4
    v_mul_f32 v5, 0x%x, v5
    v_mul_f32 v6, 0x46000000, v6
    v_mul_f32 v7, 0x46000000, v7
    ds_write_b128 v12, v[4:7] offset:20480
    s_waitcnt lgkmcnt(0)
    """ % (LOG2E, LOG2E, LOG2E | 0x80000000, INV2PI))
    for g in range(8):
        k('ds_read_b128 v[%d:%d], v13 offset:%d' % (16 + 4 * g, 19 + 4 * g, 20480 + 64 * g))
    X, Y, Pq, T = 76, 78, 80, 82
    def csq(R):
        k('v_pk_mul_f32 v[%d:%d], v[%d:%d], v[%d:%d] op_sel:[0,0] op_sel_hi:[0,1]' % (T, T + 1, R, R + 1, R, R + 1))
        k('v_pk_fma_f32 v[%d:%d], v[%d:%d], v[%d:%d], v[%d:%d] op_sel:[1,1,0] op_sel_hi:[1,0,1] neg_lo:[0,1,0]' % (R, R + 1, R, R + 1, R, R + 1, T, T + 1))
    AS, BS = 84, 100
    for g in range(8):
        Z = 16 + 4 * g
        q = g & 3
        k('s_waitcnt lgkmcnt(%d)' % (7 - g))
        k('v_pk_mul_f32 v[66:67], v[%d:%d], v[10:11]' % (Z, Z + 1))
        k('v_fract_f32 v67, v67')
        k('v_exp_f32 v70, v66')
        k('v_cos_f32 v72, v67')
        k('v_sin_f32 v73, v67')
        k('v_pk_mul_f32 v[%d:%d], v[70:71], v[72:73] op_sel:[0,0] op_sel_hi:[0,1]' % (X, X + 1))
        if int(ENV('DBGX', '0')):
            k('''
            s_nop 4
            v_mul_f32 v68, v%d, v11
            s_nop 4
            v_exp_f32 v69, v68
            ds_read_b128 v[172:175], v13 offset:%d
            s_nop 4
            v_mul_f32 v160, v69, v72
            v_mul_f32 v161, v69, v73
            v_cmp_ne_u32 vcc, v160, v76
            v_cmp_ne_u32 s[40:41], v161, v77
            s_or_b64 vcc, vcc, s[40:41]
            s_waitcnt lgkmcnt(0)
            v_cmp_ne_u32 s[40:41], v172, v%d
            s_or_b64 vcc, vcc, s[40:41]
            s_mov_b32 s42, 0xb0000000
            v_cmp_lt_f32 s[40:41], s42, v%d
            s_or_b64 vcc, vcc, s[40:41]
            s_cbranch_vccz L_dbx%d
            s_lshl_b32 s40, s2, 14
            s_add_u32 s40, s40, 0x3800000
            v_lshlrev_b32 v162, 6, v0
            v_add_u32 v162, s40, v162
            v_mov_b32 v164, %d
            v_mov_b32 v165, v66
            v_mov_b32 v166, v70
            v_mov_b32 v167, v68
            v_mov_b32 v168, v69
            v_mov_b32 v169, v%d
            v_mov_b32 v170, v76
            v_mov_b32 v171, v160
            v_mov_b32 v176, v67
            v_mov_b32 v177, v72
            v_mov_b32 v178, v73
            v_mov_b32 v179, v140
            global_store_dwordx4 v162, v[164:167], s[6:7]
            global_store_dwordx4 v162, v[168:171], s[6:7] offset:16
            global_store_dwordx4 v162, v[172:175], s[6:7] offset:32
            global_store_dwordx4 v162, v[176:179], s[6:7] offset:48
            L_dbx%d:
            ''' % (Z, 20480 + 64 * g, Z, Z, g, 0x1230 + g, Z, g))
        for b in range(4):
            k('v_cvt_pk_f16_f32 v%d, v%d, v%d' % (BS + 4 * b + q, X, X + 1))
            csq(X)
        for b in range(4):
            Pb = Pq
            k('v_pk_mul_f32 v[%d:%d], v[%d:%d], v[%d:%d] op_sel:[0,0] op_sel_hi:[0,1] neg_hi:[1,0]' % (Pb, Pb + 1, Z + 2, Z + 3, X, X + 1))
            k('v_pk_fma_f32 v[%d:%d], v[%d:%d], v[%d:%d], v[%d:%d] op_sel:[1,1,0] op_sel_hi:[1,0,1] neg_lo:[0,1,0] neg_hi:[0,1,0]' % (Pb, Pb + 1, Z + 2, Z + 3, X, X + 1, Pb, Pb + 1))
            csq(X)
            k('v_cvt_pk_f16_f32 v%d, v%d, v%d' % (AS + 4 * b + q, Pb, Pb + 1))
        k('v_fma_f32 v64, v%d, v%d, v64' % (Z + 2, X))
        k('v_fma_f32 v64, -v%d, v%d, v64' % (Z + 3, X + 1))
        beat()
        if g == int(ENV('HSG', '5')): k('global_load_dword v122, v121, s[6:7]%s' % WT)
        if q == 3:
            for b in range(4):
                A = 48 + 4 * b
                k('v_mfma_f32_16x16x32_f16 v[%d:%d], v[%d:%d], v[%d:%d], v[%d:%d]' % (A, A + 3, AS + 4 * b, AS + 4 * b + 3, BS + 4 * b, BS + 4 * b + 3, A, A + 3))
    for r in range(16):
        k('ds_write_b32 v154, v%d offset:%d' % (48 + r, 256 * r))
    k("""
    ds_write_b32 v155, v64 offset:22528
    s_waitcnt lgkmcnt(0)
    s_barrier
    ds_read_b32 v32, v157 offset:%d
    ds_read_b128 v[16:19], v158
    ds_read_b128 v[20:23], v158 offset:4096
    ds_read_b128 v[24:27], v158 offset:8192
    ds_read_b128 v[28:31], v158 offset:12288
    s_waitcnt lgkmcnt(0)
    """ % (22528 + 32))
    for i in range(4):
        k('v_add_f32 v%d, v%d, v%d' % (16 + i, 16 + i, 20 + i))
        k('v_add_f32 v%d, v%d, v%d' % (24 + i, 24 + i, 28 + i))
    for i in range(4):
        k('v_add_f32 v%d, v%d, v%d' % (16 + i, 16 + i, 24 + i))
    src, dst = 32, 33
    for r in (8, 4, 2, 1):
        k('v_add_f32_dpp v%d, v%d, v%d row_ror:%d row_mask:0xf bank_mask:0xf' % (dst, src, src, r))
        src, dst = dst, src
    k("""
    ds_write_b128 v156, v[16:19] offset:16384
    v_mov_b32 v6, 0
    ds_write_b32 v6, v%d offset:%d
    s_waitcnt lgkmcnt(0)
    s_barrier
    """ % (src, 16384 + 4 * (1024 + 128)))
    for e in range(8):
        k('ds_read_b32 v%d, v%d offset:16384' % (32 + e, 146 + e))
    k('s_waitcnt lgkmcnt(0)')
    for m in range(8):
        k('v_mul_f32 v%d, 0x39800000, v%d' % (32 + m, 32 + m))
    for m in range(4):
        k('v_cvt_pk_bf16_f32 v%d, v%d, v%d' % (124 + m, 32 + 2 * m, 33 + 2 * m))
    k('v_add_u32 v3, %d, v158' % EXO)
    k('v_add_u32 v4, %d, v159' % EXO)
    k('ds_write_b128 v3, v[124:127]')
    if KTS:
        k('s_cmp_lg_u32 s95, 0')
        k('s_cbranch_scc1 L_kts4')
        ts(4)
        k('L_kts4:')
    k('''
    s_cmp_lg_u32 s95, 0
    s_cbranch_scc1 L_B_hs_skip
    s_cmp_lg_u32 s14, 0
    s_cbranch_scc1 L_B_hs_skip
    s_cmp_eq_u32 s2, 511
    s_cbranch_scc1 L_B_hs_skip
    s_waitcnt vmcnt(0)
    v_cmp_ne_u32 vcc, v122, v120
    s_cbranch_vccnz L_B_hs_ok
    ''')
    handshake('B_hs')
    k('''
    s_lshl_b32 s8, s2, 2
    s_add_u32 s8, s8, 0x%x
    v_mov_b32 v5, s8
    v_mov_b32 v6, 1
    global_store_dword v5, v6, s[6:7]%s
    L_B_hs_skip:
    s_waitcnt lgkmcnt(0)
    s_barrier
    ds_read_b128 v[128:131], v4 offset:16
    v_cmp_eq_u32 vcc, 255, v0
    s_waitcnt lgkmcnt(0)
    v_cndmask_b32 v128, v128, 0, vcc
    v_cndmask_b32 v129, v129, 0, vcc
    v_cndmask_b32 v130, v130, 0, vcc
    v_cndmask_b32 v131, v131, 0, vcc
    s_cmp_lg_u32 s95, 0
    s_cbranch_scc1 L_kg_done
    ''' % (ACK, WT))
    if KTS: ts(5)
    for i in range(8): k('v_mov_b32 v%d, v%d' % (132 + i, 124 + i))
    for i in range(5): k('v_mov_b32 v%d, v%d' % (5 + i, 140 + i))
    k('''
    s_mov_b32 s95, 1
    s_branch L_kg
    L_kg_done:
    s_cmp_eq_u32 s94, 0
    s_cbranch_scc1 L_co_ok
    s_mov_b32 s96, 0
    L_co:
    v_add_u32 v181, 1, v181
    global_store_dword v180, v181, s[6:7]%s
    global_load_dwordx4 v[184:187], v182, s[6:7]%s
    global_load_dwordx4 v[188:191], v182, s[6:7] offset:1024%s
    s_waitcnt vmcnt(0)
    v_and_b32 v184, v184, v185
    v_and_b32 v186, v186, v187
    v_and_b32 v188, v188, v189
    v_and_b32 v190, v190, v191
    v_and_b32 v184, v184, v186
    v_and_b32 v188, v188, v190
    v_and_b32 v184, v184, v188
    v_cmp_ne_u32 vcc, 1, v184
    s_cbranch_vccz L_co_ok
    s_add_u32 s96, s96, 1
    s_cmp_lt_u32 s96, %d
    s_cbranch_scc1 L_co
    L_co_ok:
    ''' % (WT, WT, WT, BOUND))
    ts(2)
    if int(ENV('DBGK', '0')):
        k('''
        s_mul_i32 s8, s3, 8320
        s_add_u32 s8, s8, 0x400000
        v_add_u32 v3, s8, v158
        v_add_u32 v4, 4160, v3
        global_store_dwordx4 v3, v[132:135], s[6:7]
        global_store_dwordx4 v4, v[124:127], s[6:7]
        s_waitcnt vmcnt(0)
        ''')
    KR = (132, 124)
    k('''
    s_lshl_b32 s9, s3, 13
    s_add_u32 s9, s9, 0x%x
    s_lshl_b32 s10, s3, 4
    s_add_u32 s10, s10, 0x%x
    v_lshlrev_b32 v3, 4, v0
    v_lshlrev_b32 v41, 13, v0
    v_add_u32 v41, s10, v41
    v_add_u32 v42, 0x1000, v41
    v_add_u32 v6, s9, v3
    v_add_u32 v43, 0x1000, v6
    v_mov_b32 v40, v145
    v_lshlrev_b32 v4, 4, v1
    v_add_u32 v4, 0x%x, v4
    v_mov_b32 v44, 0
    v_mov_b32 v45, 0
    v_mov_b32 v46, 0
    v_mov_b32 v47, 0
    v_add_u32 v5, %d, v3
    v_mul_u32_u24 v8, %d, v0
    v_cmp_gt_u32 vcc, 8, v0
    s_and_saveexec_b64 s[12:13], vcc
    ds_write_b128 v8, v[44:47] offset:4096
    ds_write_b128 v8, v[44:47] offset:%d
    s_mov_b64 exec, s[12:13]
    v_cmp_gt_u32 vcc, 32, v0
    s_and_saveexec_b64 s[12:13], vcc
    ds_write_b128 v3, v[44:47] offset:%d
    ds_write_b128 v5, v[44:47] offset:%d
    s_mov_b64 exec, s[12:13]
    ''' % (WS_AOT, WS_XT, F1, AB, CP, AB + 4096, XB, XB))
    k('''
    v_lshrrev_b32 v9, 4, v1
    v_and_b32 v10, 15, v1
    v_lshrrev_b32 v11, 3, v10
    v_and_b32 v12, 7, v10
    v_mul_u32_u24 v12, %d, v12
    v_sub_u32 v13, v9, v11
    v_lshlrev_b32 v13, 4, v13
    v_add_u32 v12, v12, v13
    v_lshlrev_b32 v13, 7, v2
    v_sub_u32 v12, v12, v13
    v_add_u32 v12, %d, v12
    v_lshlrev_b32 v14, 5, v10
    v_lshl_add_u32 v14, v9, 4, v14
    v_sub_u32 v14, v14, v13
    v_add_u32 v14, %d, v14
    v_lshlrev_b32 v15, 6, v10
    v_lshl_add_u32 v15, v9, 4, v15
    v_lshl_add_u32 v15, v2, 13, v15
    v_add_u32 v10, %d, v12
    v_add_u32 v11, %d, v14
    v_lshlrev_b32 v9, 5, v0
    ''' % (CP, 4080 - 32 * 3 - 3584, XB + 512 - 32 * 3, AB, AB))
    for i in range(64): k('v_mov_b32 v%d, 0' % (192 + i))
    for ch in range(2):
        K0 = KR[ch]
        T_ = 48 + 18 * ch
        base = 3 if ch == 0 else 5
        for kk in range(6):
            k('v_alignbit_b32 v%d, v%d, v%d, 16' % (T_ + kk, K0 + 1 + kk, K0 + kk))
            k('v_alignbit_b32 v%d, v%d, v%d, 16' % (T_ + 6 + kk, K0 + 2 + kk, K0 + 1 + kk))
            k('v_mov_b32 v%d, v%d' % (T_ + 12 + kk, K0 + 1 + kk))
        for r in range(8):
            sh = 7 - r
            src = {0: K0, 2: T_ + 12, 4: K0 + 2, 6: T_ + 14, 1: T_, 3: T_ + 6, 5: T_ + 2, 7: T_ + 8}[sh]
            k('ds_write_b128 v%d, v[%d:%d] offset:%d' % (base, src, src + 3, r * CP))
    if not KTS: ts(3)
    poll('B_poll', 4, 16, wide=True)
    if not KTS: ts(4)
    k('''
    global_load_dwordx4 v[24:27], v41, s[6:7]
    global_load_dwordx4 v[36:39], v42, s[6:7]
    s_waitcnt vmcnt(0)
    v_mov_b32 v28, v26
    v_mov_b32 v29, v27
    v_mov_b32 v26, v36
    v_mov_b32 v27, v37
    v_mov_b32 v36, v28
    v_mov_b32 v37, v29
    ds_write_b128 v3, v[24:27] offset:%d
    ds_write_b128 v5, v[36:39] offset:%d
    s_waitcnt lgkmcnt(0)
    s_barrier
    ''' % (XB + 512, XB + 512))
    if not KTS: ts(5)
    def af(set_, m): return 64 + 64 * set_ + 4 * m
    def bf(set_, dl): return 64 + 64 * set_ + 32 + 4 * dl
    def reads(ch, set_):
        ex = 64 if set_ == 0 else 0
        ra, rb = (12, 14) if ch == 0 else (10, 11)
        for m in range(8):
            k('ds_read_b128 v[%d:%d], v%d offset:%d' % (af(set_, m), af(set_, m) + 3, ra, 512 * (7 - m) + ex))
            k('ds_read_b128 v[%d:%d], v%d offset:%d' % (bf(set_, m), bf(set_, m) + 3, rb, 512 * m + ex))
    def mm(ch, set_):
        for m in range(8):
            for n in range(m, 8):
                A = 192 + 32 * ch + 4 * n
                k('v_mfma_f32_16x16x32_bf16 v[%d:%d], v[%d:%d], v[%d:%d], v[%d:%d]' % (
                    A, A + 3, af(set_, m), af(set_, m) + 3, bf(set_, n - m), bf(set_, n - m) + 3, A, A + 3))
    reads(0, 0)
    k('s_waitcnt lgkmcnt(0)')
    reads(0, 1)
    mm(0, 0)
    k('s_waitcnt lgkmcnt(0)')
    reads(1, 0)
    mm(0, 1)
    k('s_waitcnt lgkmcnt(0)')
    reads(1, 1)
    mm(1, 0)
    k('s_waitcnt lgkmcnt(0)')
    k('s_barrier')
    mm(1, 1)
    ts(6)
    k('v_add_u32 v13, %d, v15' % AB)
    for ch in range(2):
        for n in range(8):
            A = 192 + 32 * ch + 4 * n
            k('ds_write_b128 v%d, v[%d:%d] offset:%d' % (15 if ch == 0 else 13, A, A + 3, 1024 * n))
    k('''
    v_add_u32 v13, %d, v9
    v_and_b32 v41, 0xffff0000, v40
    v_lshlrev_b32 v40, 16, v40
    s_waitcnt lgkmcnt(0)
    s_barrier
    ''' % AB)
    for ch in range(2):
        for w in range(4):
            for hf in range(2):
                r = 64 + 32 * ch + 8 * w + 4 * hf
                k('ds_read_b128 v[%d:%d], v%d offset:%d' % (r, r + 3, 9 if ch == 0 else 13, 8192 * w + 16 * hf))
    ts(7)
    for ch in range(2):
        S = 128 + 16 * ch
        Xr = 24 + 12 * ch
        for i in range(4):
            k('v_lshlrev_b32 v%d, 16, v%d' % (S + 2 * i, Xr + i))
            k('v_and_b32 v%d, 0xffff0000, v%d' % (S + 1 + 2 * i, Xr + i))
        for i in range(8): k('v_mul_f32 v%d, v%d, v%d' % (S + i, S + i, 40 + ch))
        for i in range(4): k('v_cvt_pk_bf16_f32 v%d, v%d, v%d' % (S + 8 + i, S + 2 * i, S + 1 + 2 * i))
        for i in range(4):
            k('v_lshlrev_b32 v%d, 16, v%d' % (S + 2 * i, S + 8 + i))
            k('v_and_b32 v%d, 0xffff0000, v%d' % (S + 1 + 2 * i, S + 8 + i))
    for ch in range(2):
        S = 128 + 16 * ch
        R = 64 + 32 * ch
        k('s_waitcnt lgkmcnt(%d)' % (8 if ch == 0 else 0))
        for i in range(8):
            k('v_add_f32 v%d, v%d, v%d' % (R + i, R + i, R + 8 + i))
            k('v_add_f32 v%d, v%d, v%d' % (R + 16 + i, R + 16 + i, R + 24 + i))
        for i in range(8): k('v_add_f32 v%d, v%d, v%d' % (R + i, R + i, R + 16 + i))
        for i in range(4): k('v_cvt_pk_bf16_f32 v%d, v%d, v%d' % (S + 8 + i, R + 2 * i, R + 1 + 2 * i))
        for i in range(4):
            k('v_lshlrev_b32 v%d, 16, v%d' % (R + 2 * i, S + 8 + i))
            k('v_and_b32 v%d, 0xffff0000, v%d' % (R + 1 + 2 * i, S + 8 + i))
        for i in range(8): k('v_add_f32 v%d, v%d, v%d' % (R + i, R + i, S + i))
        for i in range(4): k('v_cvt_pk_bf16_f32 v%d, v%d, v%d' % (S + 8 + i, R + 2 * i, R + 1 + 2 * i))
        k('global_store_dwordx4 v%d, v[%d:%d], s[6:7]%s' % (6 if ch == 0 else 43, S + 8, S + 11, WT))
    k('''
    s_waitcnt vmcnt(0)
    s_barrier
    s_cmp_lg_u32 s14, 0
    s_cbranch_scc1 L_B_end
    s_lshl_b32 s8, s3, 2
    s_add_u32 s8, s8, 0x%x
    v_mov_b32 v3, s8
    v_mov_b32 v4, 1
    global_store_dword v3, v4, s[6:7]%s
    L_B_end:
    ''' % (F3, WT))
    ts(8)
    tsout()
    k('''
    L_end:
    s_endpgm
    ''')
    return (k, 256, 0, 512, LDS)

if __name__ == '__main__':
    import sys
    HDR = open('parallel_sum__ssm_conv_s4d__glu_gated_geglu__prompt.s.ref').read().split('; Override launch')[0]
    kernels = [build()]
    out = [HDR.rstrip('\n')]
    for (k, v, a, g, lds) in kernels:
        out.append('; @launch kernel=%s grid=(%d,1,1) block=(256,1,1) lds=%d' % (k.name, g, lds))
    out.append('.amdgcn_target "amdgcn-amd-amdhsa--gfx950"')
    out.append('.text')
    for (k, v, a, g, lds) in kernels:
        out.append(kernel_text(k, v))
    out.append('.section .rodata,"a"')
    for (k, v, a, g, lds) in kernels:
        out.append('.p2align 6')
        out.append(kd_text(k.name, v, a))
    dst = sys.argv[1]
    open(dst, 'w').write('\n'.join(out) + '\n')
    print('wrote', dst)
```

```python
from asmlib import *
import os, struct

def f32(x): return struct.unpack('<I', struct.pack('<f', x))[0]
ENV = lambda n, d: os.environ.get(n, d)
TS = int(ENV('TS', '0'))
WT = ' sc0 sc1'

WS_XF = 0
WS_XT = 0x200000
WS_AOT = 0xA00000
WS_H = 0xC00000
WS_WGU = 0x1400000
WS_WDF = 0x1800000
CT = 0x2000000
F1, F2, FH, F3, ACK = CT, CT + 0x400, CT + 0x800, CT + 0xC00, CT + 0x1000
HB = CT + 0x10000
LOG2E = 0x3fb8aa3b
INV2PI = 0x3e22f983
BOUND = 1 << 17
LDS = 81920
PRIO_A = int(ENV('PRIO_A', '3'))
PRIO_B = int(ENV('PRIO_B', '2'))
PRIO_A2 = int(ENV('PRIO_A2', '1'))
PRIO_B2 = int(ENV('PRIO_B2', '0'))
PRIO_BV = int(ENV('PRIO_BV', '3'))

CP = 4176
XB = 8 * CP
AB = 38912
EXO = 77824
STG = 16384
NB = 5
G2N = int(ENV('G2N', '1'))
NWR = int(ENV('NWR', '8'))
NWL = 10

class VQ:
    def __init__(self): self.q = []
    def clone(self):
        c = VQ(); c.q = list(self.q); return c
    def issue(self, tag, n=1): self.q += [tag] * n
    def wait(self, tag):
        idx = [i for i, t in enumerate(self.q) if t == tag]
        if not idx: return None
        n = len(self.q) - 1 - idx[-1]
        self.q = self.q[idx[-1] + 1:]
        return n

def interleave(lists):
    out = []
    n = max(len(l) for l in lists)
    for i in range(n):
        for l in lists:
            if i < len(l): out.append(l[i])
    return out

def build():
    k = Kernel('fused_kernel')
    nst = [0]
    def ts(i):
        if TS: k('s_memrealtime s[%d:%d]' % (60 + 2 * i, 61 + 2 * i))
    def tsout():
        if not TS: return
        k('s_waitcnt vmcnt(0)')
        ts(9)
        k('''
        s_waitcnt lgkmcnt(0)
        v_lshrrev_b32 v1, 6, v0
        v_readfirstlane_b32 s3, v1
        s_getreg_b32 s58, hwreg(HW_REG_HW_ID)
        s_getreg_b32 s59, hwreg(HW_REG_XCC_ID)
        ''')
        for i in range(10): k('v_mov_b32 v%d, s%d' % (16 + i, 60 + 2 * i))
        k('''
        v_mov_b32 v26, s58
        v_mov_b32 v27, s59
        s_lshl_b32 s16, s2, 8
        s_lshl_b32 s17, s3, 6
        s_add_u32 s16, s16, s17
        s_add_u32 s16, s16, 0x3400000
        v_mov_b32 v28, s16
        global_store_dwordx4 v28, v[16:19], s[6:7]
        global_store_dwordx4 v28, v[20:23], s[6:7] offset:16
        global_store_dwordx4 v28, v[24:27], s[6:7] offset:32
        ''')
    def poll(name, va, vd, wide=False, slp=2):
        k('s_mov_b32 s96, 0')
        k('L_%s:' % name)
        if wide:
            k('global_load_dwordx4 v[%d:%d], v%d, s[6:7]%s' % (vd, vd + 3, va, WT))
            k('s_waitcnt vmcnt(0)')
            k('v_and_b32 v%d, v%d, v%d' % (vd, vd, vd + 1))
            k('v_and_b32 v%d, v%d, v%d' % (vd + 2, vd + 2, vd + 3))
            k('v_and_b32 v%d, v%d, v%d' % (vd, vd, vd + 2))
        else:
            k('global_load_dword v%d, v%d, s[6:7]%s' % (vd, va, WT))
            k('s_waitcnt vmcnt(0)')
        k('''
        v_cmp_ne_u32 vcc, 1, v%d
        s_cbranch_vccz L_%s_ok
        s_add_u32 s96, s96, 1
        s_cmp_lt_u32 s96, %d
        s_cbranch_scc0 L_%s_ok
        s_sleep %d
        s_branch L_%s
        L_%s_ok:
        ''' % (vd, name, BOUND, name, slp, name, name))
    def handshake(name):
        k('s_mov_b32 s96, 0')
        k('L_%s:' % name)
        k('''
        global_load_dword v122, v121, s[6:7]%s
        s_waitcnt vmcnt(0)
        v_cmp_ne_u32 vcc, v122, v120
        s_cbranch_vccnz L_%s_ok
        s_add_u32 s96, s96, 1
        s_cmp_lt_u32 s96, %d
        s_cbranch_scc0 L_%s_ok
        s_sleep 1
        s_branch L_%s
        L_%s_ok:
        ''' % (WT, name, BOUND, name, name, name))

    def pf_setup():
        k('''
        s_lshr_b32 s26, s2, 5
        s_mul_i32 s26, s26, 112
        s_mul_i32 s27, s14, 28
        s_add_u32 s26, s26, s27
        s_lshl_b32 s26, s26, 11
        s_add_u32 s26, s26, 0x%x
        s_add_u32 s30, s6, s26
        s_addc_u32 s31, s7, 0
        s_add_u32 s26, s30, %d
        s_addc_u32 s27, s31, 0
        s_mul_i32 s28, s14, 20480
        s_lshr_b32 s29, s14, 1
        s_lshl_b32 s29, s29, 10
        v_and_b32 v8, 31, v1
        v_lshlrev_b32 v8, 2, v8
        v_add_u32 v8, 0x%x, v8
        ''' % (WS_WDF, NWR * 2048, F2))
    def pf_addr():
        return ['v_lshl_add_u32 v4, v1, 4, s29', 'v_xor_b32 v5, 0x400, v4']
    PFR = int(ENV('PFR', '1'))
    def pf_reg():
        L = []
        for s in range(NWR):
            for a in range(2):
                r = 64 + 8 * s + 4 * a
                L.append(['global_load_dwordx4 v[%d:%d], v%d, s[30:31] offset:%d' % (r, r + 3, 4 + a, 2048 * (s & 1))])
            if s & 1: L[-1] += ['s_add_u32 s30, s30, 4096', 's_addc_u32 s31, s31, 0']
        return L
    def pf_list():
        L = [] if PFR else pf_reg()
        if PFR == 2: return L
        return L + pf_lds()
    def pf_lds():
        L = []
        for j in range(NWL // 2):
            for q in range(4):
                g = []
                if q == 0: g += ['s_add_u32 m0, s28, %d' % (4096 * j)]
                g += ['global_load_lds_dwordx4 v3, s[26:27] offset:%d' % (1024 * q)]
                if q == 3: g += ['s_add_u32 s26, s26, 4096', 's_addc_u32 s27, s27, 0']
                L.append(g)
        return L

    ts(0)
    k('''
    s_cmp_ge_u32 s2, 512
    s_cbranch_scc1 L_end
    s_load_dwordx2 s[4:5], s[0:1], 0
    s_load_dwordx2 s[6:7], s[0:1], 104
    s_add_u32 s2, s2, 511
    s_and_b32 s2, s2, 511
    v_and_b32 v1, 63, v0
    v_lshrrev_b32 v2, 6, v0
    v_readfirstlane_b32 s14, v2
    s_and_b32 s8, s2, 63
    s_lshl_b32 s8, s8, 8
    s_add_u32 s8, s8, 0x%x
    v_mov_b32 v121, s8
    s_cmp_ge_u32 s2, 256
    s_cbranch_scc1 L_B
    s_setprio %d
    s_cmp_ge_u32 s14, 2
    s_cbranch_scc1 L_A_rl
    ''' % (HB, PRIO_A))
    k('''
    v_and_b32 v3, 15, v1
    v_lshrrev_b32 v4, 4, v1
    v_lshl_add_u32 v5, v2, 2, v4
    s_lshl_b32 s8, s2, 13
    v_lshlrev_b32 v6, 10, v5
    v_lshl_add_u32 v6, v3, 6, v6
    v_add_u32 v6, s8, v6
    v_mul_u32_u24 v7, 0x440, v5
    v_lshl_add_u32 v7, v3, 6, v7
    s_waitcnt lgkmcnt(0)
    ''')
    B = 16
    for c in range(4):
        k('global_load_dwordx4 v[%d:%d], v6, s[4:5] offset:%d' % (B + 4 * c, B + 3 + 4 * c, 16 * c))
    k('global_load_dword v120, v121, s[6:7]%s' % WT)
    k('''
    s_lshr_b32 s8, s2, 4
    s_lshl_b32 s8, s8, 17
    s_bfe_u32 s9, s2, 0x20002
    s_lshl_b32 s9, s9, 11
    s_add_u32 s8, s8, s9
    s_and_b32 s9, s2, 3
    s_lshl_b32 s9, s9, 7
    s_add_u32 s8, s8, s9
    v_lshlrev_b32 v13, 13, v3
    v_lshl_add_u32 v13, v5, 4, v13
    v_add_u32 v13, s8, v13
    v_lshrrev_b32 v9, 2, v1
    v_and_b32 v9, 3, v9
    v_lshl_add_u32 v9, v2, 2, v9
    v_mul_u32_u24 v9, 0x440, v9
    v_and_b32 v10, 3, v1
    v_lshl_add_u32 v9, v10, 3, v9
    v_lshl_add_u32 v9, v4, 5, v9
    s_lshl_b32 s8, s2, 13
    s_lshl_b32 s9, s14, 12
    s_add_u32 s8, s8, s9
    s_add_u32 s8, s8, 0x%x
    v_lshlrev_b32 v10, 3, v1
    v_add_u32 v10, s8, v10
    s_waitcnt vmcnt(1)
    ''' % WS_XT)
    ts(1)
    for i in range(16):
        k('v_lshlrev_b32 v%d, 16, v%d' % (48 + 2 * i, B + i))
        k('v_and_b32 v%d, 0xffff0000, v%d' % (49 + 2 * i, B + i))
    PB = 'op_sel:[0,0] op_sel_hi:[1,0]'
    k('v_pk_add_f32 v[80:81], v[48:49], v[50:51]')
    k('v_pk_add_f32 v[82:83], v[52:53], v[54:55]')
    for j in range(2, 8):
        k('v_pk_add_f32 v[80:81], v[80:81], v[%d:%d]' % (48 + 4 * j, 49 + 4 * j))
        k('v_pk_add_f32 v[82:83], v[82:83], v[%d:%d]' % (50 + 4 * j, 51 + 4 * j))
    k('v_pk_add_f32 v[80:81], v[80:81], v[82:83]')
    k('v_add_f32 v80, v80, v81')
    src, dst = 80, 81
    for r in (8, 4, 2, 1):
        k('v_add_f32_dpp v%d, v%d, v%d row_ror:%d row_mask:0xf bank_mask:0xf' % (dst, src, src, r))
        src, dst = dst, src
    k('v_mul_f32 v82, 0x3b000000, v%d' % src)
    for i in range(16):
        t = 88 + 2 * (i & 1)
        k('v_pk_add_f32 v[%d:%d], v[%d:%d], v[82:83] %s neg_lo:[0,1] neg_hi:[0,1]' % (t, t + 1, 48 + 2 * i, 49 + 2 * i, PB))
        if i < 2:
            k('v_pk_mul_f32 v[%d:%d], v[%d:%d], v[%d:%d]' % (84 + 2 * (i & 1), 85 + 2 * (i & 1), t, t + 1, t, t + 1))
        else:
            k('v_pk_fma_f32 v[%d:%d], v[%d:%d], v[%d:%d], v[%d:%d]' % (84 + 2 * (i & 1), 85 + 2 * (i & 1), t, t + 1, t, t + 1, 84 + 2 * (i & 1), 85 + 2 * (i & 1)))
    k('v_pk_add_f32 v[84:85], v[84:85], v[86:87]')
    k('v_add_f32 v84, v84, v85')
    src, dst = 84, 85
    for r in (8, 4, 2, 1):
        k('v_add_f32_dpp v%d, v%d, v%d row_ror:%d row_mask:0xf bank_mask:0xf' % (dst, src, src, r))
        src, dst = dst, src
    k('''
    v_mul_f32 v86, 0x3b000000, v%d
    v_cvt_pk_bf16_f32 v82, v82, v86
    v_and_b32 v86, 0xffff0000, v82
    v_lshlrev_b32 v82, 16, v82
    v_add_f32 v86, 0x3727c5ac, v86
    v_cvt_pk_bf16_f32 v86, v86, v86
    v_lshlrev_b32 v86, 16, v86
    v_sqrt_f32 v86, v86
    s_nop 0
    v_cvt_pk_bf16_f32 v86, v86, v86
    v_lshlrev_b32 v86, 16, v86
    v_rcp_f32 v84, v86
    ''' % src)
    for i in range(16):
        a, b = 48 + 2 * i, 49 + 2 * i
        t = 88 + 4 * (i & 1)
        k('v_pk_add_f32 v[%d:%d], v[%d:%d], v[82:83] %s neg_lo:[0,1] neg_hi:[0,1]' % (a, b, a, b, PB))
        k('v_cvt_pk_bf16_f32 v%d, v%d, v%d' % (t, a, b))
        k('v_lshlrev_b32 v%d, 16, v%d' % (a, t))
        k('v_and_b32 v%d, 0xffff0000, v%d' % (b, t))
        k('v_pk_mul_f32 v[%d:%d], v[%d:%d], v[84:85] %s' % (t, t + 1, a, b, PB))
        k('v_pk_fma_f32 v[%d:%d], v[%d:%d], v[86:87], v[%d:%d] op_sel:[0,0,0] op_sel_hi:[1,0,1] neg_lo:[1,0,0] neg_hi:[1,0,0]' % (t + 2, t + 3, t, t + 1, a, b))
        k('v_pk_fma_f32 v[%d:%d], v[%d:%d], v[84:85], v[%d:%d] op_sel:[0,0,0] op_sel_hi:[1,0,1]' % (t, t + 1, t + 2, t + 3, t, t + 1))
        k('v_cvt_pk_bf16_f32 v%d, v%d, v%d' % (B + i, t, t + 1))
        if (i & 3) == 3:
            c = i >> 2
            k('global_store_dwordx4 v13, v[%d:%d], s[6:7] offset:%d%s' % (B + 4 * c, B + 4 * c + 3, 512 * c, WT))
            k('ds_write_b128 v7, v[%d:%d] offset:%d' % (B + 4 * c, B + 4 * c + 3, 16 * c))
    k('s_waitcnt lgkmcnt(0)')
    for q in range(8):
        k('ds_read_b64_tr_b16 v[%d:%d], v9 offset:%d' % (48 + 2 * q, 49 + 2 * q, 128 * q))
    for q in range(8):
        k('s_waitcnt lgkmcnt(%d)' % (7 - q))
        k('global_store_dwordx2 v10, v[%d:%d], s[6:7] offset:%d%s' % (48 + 2 * q, 49 + 2 * q, 512 * q, WT))
    ts(2)
    k('''
    s_cmp_lg_u32 s14, 0
    s_cbranch_scc1 L_A_p1w
    ''')
    handshake('A_hs')
    k('s_branch L_A_p1w')

    k('''
    L_A_rl:
    s_cmp_ge_u32 s2, 224
    s_cbranch_scc1 L_A_p1w
    s_and_b32 s8, s2, 3
    s_lshl_b32 s8, s8, 2
    s_bfe_u32 s9, s2, 0x20003
    s_or_b32 s8, s8, s9
    s_bfe_u32 s9, s2, 0x10002
    s_mul_i32 s9, s9, 7
    s_lshr_b32 s10, s2, 5
    s_add_u32 s9, s9, s10
    s_lshl_b32 s3, s9, 4
    s_add_u32 s3, s3, s8
    s_and_b32 s8, s14, 1
    s_mul_i32 s8, s8, 224
    s_add_u32 s3, s3, s8
    s_mov_b32 s95, 0
    L_rl:
    s_load_dwordx4 s[8:11], s[0:1], 64
    s_load_dwordx2 s[12:13], s[0:1], 80
    v_lshrrev_b32 v3, 4, v1
    v_and_b32 v4, 15, v1
    v_lshrrev_b32 v5, 2, v1
    v_and_b32 v5, 3, v5
    v_and_b32 v6, 3, v1
    v_and_b32 v7, 1, v3
    v_lshrrev_b32 v8, 1, v3
    v_and_b32 v9, 1, v6
    v_lshrrev_b32 v10, 1, v6
    s_waitcnt lgkmcnt(0)
    s_cmp_ge_u32 s3, 448
    s_cbranch_scc1 L_rl_d
    s_cmp_ge_u32 s3, 224
    s_cselect_b32 s8, s10, s8
    s_cselect_b32 s9, s11, s9
    s_cselect_b32 s15, 1, 0
    s_cselect_b32 s16, 224, 0
    s_sub_u32 s25, s3, s16
    s_lshr_b32 s16, s25, 4
    s_and_b32 s17, s25, 15
    s_mul_i32 s18, s17, %d
    s_lshl_b32 s19, s16, 8
    s_add_u32 s18, s18, s19
    s_add_u32 s8, s8, s18
    s_addc_u32 s9, s9, 0
    s_lshl_b32 s18, s25, 1
    s_add_u32 s18, s18, s15
    s_lshl_b32 s18, s18, 13
    s_add_u32 s18, s18, 0x%x
    s_movk_i32 s19, 3584
    s_movk_i32 s20, 4096
    s_movk_i32 s21, 2048
    s_movk_i32 s22, 1024
    v_lshlrev_b32 v11, 2, v7
    v_lshl_add_u32 v11, v9, 1, v11
    v_add_u32 v11, v11, v10
    s_branch L_rl_go
    L_rl_d:
    s_sub_u32 s25, s3, 448
    s_lshr_b32 s16, s25, 2
    s_and_b32 s17, s25, 3
    s_lshl_b32 s18, s16, 15
    s_lshl_b32 s19, s17, 8
    s_add_u32 s18, s18, s19
    s_add_u32 s8, s12, s18
    s_addc_u32 s9, s13, 0
    s_mul_i32 s18, s17, %d
    s_lshl_b32 s19, s16, 12
    s_add_u32 s18, s18, s19
    s_add_u32 s18, s18, 0x%x
    s_movk_i32 s19, 1024
    s_mov_b32 s20, %d
    s_movk_i32 s21, 1024
    s_movk_i32 s22, 2048
    v_lshlrev_b32 v11, 2, v9
    v_lshl_add_u32 v11, v7, 1, v11
    v_add_u32 v11, v11, v10
    L_rl_go:
    v_mul_lo_u32 v12, v3, s19
    v_lshl_add_u32 v12, v4, 4, v12
    s_lshl_b32 s23, s19, 2
    s_mul_i32 s24, s14, 8704
    v_mul_u32_u24 v13, 272, v3
    v_lshl_add_u32 v13, v4, 4, v13
    v_add_u32 v13, s24, v13
    ''' % (32 * 3584, WS_WGU, 2 * 112 * 2048, WS_WDF, 112 * 2048))
    for i in range(8):
        k('global_load_dwordx4 v[%d:%d], v12, s[8:9]' % (16 + 4 * i, 19 + 4 * i))
        if i < 7: k('v_add_u32 v12, s23, v12')
    k('''
    v_lshl_add_u32 v14, v8, 3, v5
    v_mul_u32_u24 v14, 272, v14
    v_lshl_add_u32 v14, v11, 3, v14
    v_add_u32 v14, s24, v14
    v_lshlrev_b32 v15, 4, v1
    v_add_u32 v15, s18, v15
    ''')
    for i in range(8):
        k('s_waitcnt vmcnt(%d)' % (7 - i))
        k('ds_write_b128 v13, v[%d:%d] offset:%d' % (16 + 4 * i, 19 + 4 * i, 1088 * i))
    k('s_waitcnt lgkmcnt(0)')
    for cb in range(4):
        for kh in range(2):
            f = 2 * cb + kh
            for h in range(2):
                k('ds_read_b64_tr_b16 v[%d:%d], v14 offset:%d' % (48 + 4 * f + 2 * h, 49 + 4 * f + 2 * h, (16 * kh + 4 * h) * 272 + 64 * cb))
    k('''
    v_add_u32 v16, s21, v15
    v_add_u32 v17, s20, v15
    v_add_u32 v18, s21, v17
    v_add_u32 v19, s22, v15
    v_add_u32 v20, s22, v16
    v_add_u32 v21, s22, v17
    v_add_u32 v22, s22, v18
    ''')
    addr = {(0, 0): 15, (1, 0): 16, (2, 0): 17, (3, 0): 18, (0, 1): 19, (1, 1): 20, (2, 1): 21, (3, 1): 22}
    for cb in range(4):
        for kh in range(2):
            f = 2 * cb + kh
            k('s_waitcnt lgkmcnt(%d)' % (14 - 2 * f))
            k('global_store_dwordx4 v%d, v[%d:%d], s[6:7]%s' % (addr[(cb, kh)], 48 + 4 * f, 51 + 4 * f, WT))
    k('''
    s_cmp_lg_u32 s95, 0
    s_cbranch_scc1 L_wd_next
    ''')
    k('''
    L_A_p1w:
    s_waitcnt vmcnt(0) lgkmcnt(0)
    s_barrier
    s_cmp_lg_u32 s14, 0
    s_cbranch_scc1 L_A_p1f
    s_lshl_b32 s8, s2, 2
    s_add_u32 s8, s8, 0x%x
    v_mov_b32 v3, s8
    v_mov_b32 v4, 1
    global_store_dword v3, v4, s[6:7] offset:-2048%s
    global_store_dword v3, v4, s[6:7] offset:%d%s
    L_A_p1f:
    s_setprio %d
    ''' % (F1 + 2048, WT, ACK - F1 - 2048, WT, PRIO_A2))
    ts(3)
    k('''
    s_cmp_lt_u32 s2, 224
    s_cbranch_scc1 L_G1
    ''')
    k('''
    s_sub_u32 s3, s2, 224
    s_mul_i32 s3, s3, 7
    s_add_u32 s3, s3, s14
    s_add_u32 s3, s3, 448
    s_mov_b32 s95, 1
    s_branch L_rl
    L_wd_next:
    s_cmp_eq_u32 s95, 2
    s_cbranch_scc1 L_wd_done
    s_cmp_eq_u32 s14, 3
    s_cbranch_scc1 L_wd_done
    s_add_u32 s3, s3, 4
    s_mov_b32 s95, 2
    s_waitcnt vmcnt(0)
    s_branch L_rl
    L_wd_done:
    s_waitcnt vmcnt(0) lgkmcnt(0)
    s_barrier
    s_cmp_lg_u32 s14, 0
    s_cbranch_scc1 L_wd_f
    s_lshl_b32 s8, s2, 2
    s_add_u32 s8, s8, 0x%x
    v_mov_b32 v3, s8
    v_mov_b32 v4, 1
    global_store_dword v3, v4, s[6:7]%s
    L_wd_f:
    ''' % (F2 - 4 * 224, WT))
    if G2N:
        pf_setup()
        k('v_lshlrev_b32 v3, 4, v1')
        for l in pf_addr(): k(l)
        poll('sp_f2', 8, 9, slp=8)
        for g in pf_list():
            for l in g: k(l)
        k('s_waitcnt vmcnt(0)')
    k('s_branch L_G2')
    if G2N:
        k('L_pf_slow:')
        poll('g1_f2', 8, 9)
        k('s_branch L_pf_ok')

    k('''
    L_G1:
    s_mov_b32 s3, s14
    s_and_b32 s4, s2, 3
    s_lshl_b32 s4, s4, 2
    s_bfe_u32 s8, s2, 0x20003
    s_or_b32 s4, s4, s8
    s_bfe_u32 s5, s2, 0x10002
    s_mul_i32 s5, s5, 7
    s_lshr_b32 s8, s2, 5
    s_add_u32 s5, s5, s8
    v_and_b32 v3, 15, v1
    s_lshl_b32 s8, s4, 4
    v_add_u32 v4, s8, v3
    v_lshrrev_b32 v5, 2, v3
    v_and_b32 v6, 3, v3
    v_lshl_add_u32 v5, v6, 3, v5
    s_and_b32 s8, s2, 0xe4
    v_or_b32 v5, s8, v5
    v_and_b32 v6, 16, v1
    v_cmp_eq_u32 vcc, 0, v6
    v_cndmask_b32 v4, v5, v4, vcc
    v_lshlrev_b32 v4, 2, v4
    v_add_u32 v8, 0x%x, v4
    v_lshlrev_b32 v3, 4, v1
    v_and_b32 v4, 1, v2
    v_lshl_add_u32 v4, v4, 12, v3
    v_lshl_add_u32 v5, v2, 12, v3
    s_lshl_b32 s8, s4, 17
    s_lshl_b32 s9, s5, 18
    s_add_u32 s9, s9, 0x%x
    s_lshl_b32 s15, s3, 12
    s_add_u32 s10, s6, s8
    s_addc_u32 s11, s7, 0
    s_add_u32 s12, s6, s9
    s_addc_u32 s13, s7, 0
    v_lshrrev_b32 v7, 1, v2
    v_lshl_add_u32 v7, v7, 12, v3
    v_add_u32 v6, 0x10000, v7
    ''' % (F1, WS_WGU))
    ACC = 128
    for i in range(128): k('v_mov_b32 v%d, 0' % (ACC + i))
    poll('G1_poll', 8, 9)
    ts(4)
    if G2N: pf_setup()
    D = NB - 1
    def xr(stage, kh, b): return 48 + 16 * (stage % NB) + 8 * kh + 4 * b
    def dma(stage):
        sb = STG * (stage % NB)
        L = []
        L.append(['s_add_u32 m0, s15, %d' % sb,
                  's_nop 0',
                  'global_load_lds_dwordx4 v5, s[12:13]'])
        L.append(['global_load_lds_dwordx4 v5, s[12:13] offset:1024'])
        L.append(['global_load_lds_dwordx4 v5, s[12:13] offset:2048'])
        L.append(['global_load_lds_dwordx4 v5, s[12:13] offset:3072',
                  's_add_u32 s12, s12, 16384',
                  's_addc_u32 s13, s13, 0'])
        for kh in range(2):
            for b in range(2):
                r = xr(stage, kh, b)
                L.append(['global_load_dwordx4 v[%d:%d], v4, s[10:11] offset:%d' % (r, r + 3, b * 2048 + kh * 1024)])
        L[-1] += ['s_add_u32 s10, s10, 8192', 's_addc_u32 s11, s11, 0']
        EX = int(ENV('EX', '0'))
        if stage >= 4 and EX:
            for g in L:
                for i, l in enumerate(g):
                    if (EX & 1) and l.startswith('global_load_dwordx4'):
                        g[i] = 'global_load_dword v9, v8, s[6:7]'
                    if (EX & 2) and l.startswith('global_load_lds'):
                        g[i] = 'global_load_dword v9, v8, s[6:7]'
        return L
    for st in range(D):
        for grp in dma(st):
            for l in grp: k(l)
    T1 = int(ENV('T1', '0'))
    if T1:
        k('''
        s_bfe_u32 s16, s2, 0x20003
        s_lshl_b32 s16, s16, 7
        s_lshl_b32 s17, s3, 15
        s_add_u32 s16, s16, s17
        v_lshlrev_b32 v10, 9, v1
        v_add_u32 v10, s16, v10
        global_load_dword v12, v10, s[12:13]
        s_add_u32 s16, s16, 0x20000
        s_lshr_b32 s17, s2, 5
        s_mul_i32 s18, s3, 448
        s_add_u32 s17, s17, s18
        s_sub_u32 s17, s17, 896
        s_lshl_b32 s17, s17, 7
        s_cmp_lt_u32 s3, 2
        s_cselect_b32 s16, s16, s17
        s_cselect_b32 s17, 4, 7
        s_cselect_b32 s18, -1, %d
        s_cselect_b32 s20, s12, s10
        s_cselect_b32 s21, s13, s11
        s_lshl_b32 s17, s17, 7
        v_mul_u32_u24 v11, s17, v1
        v_add_u32 v11, s16, v11
        v_min_u32 v11, s18, v11
        global_load_dword v13, v11, s[20:21]
        ''' % (767 * 128))
    def acc(mat, a, b): return ACC + 16 * ((mat * 2 + a) * 2 + b)
    def wf(kh, mat, a): return 16 + 16 * kh + 4 * (mat * 2 + a)
    def wreads(s, kh):
        sb = STG * (s % NB)
        for mat in range(2):
            for a in range(2):
                r = wf(kh, mat, a)
                off = sb + mat * 8192 + a * 2048 + kh * 1024
                if off >= 65536:
                    k('ds_read_b128 v[%d:%d], v6 offset:%d' % (r, r + 3, off - 65536))
                else:
                    k('ds_read_b128 v[%d:%d], v7 offset:%d' % (r, r + 3, off))
    def mfmas(s, kh, DL):
        di = 0
        for mat in range(2):
            for a in range(2):
                for b in range(2):
                    A = acc(mat, a, b)
                    k('v_mfma_f32_32x32x16_bf16 v[%d:%d], v[%d:%d], v[%d:%d], v[%d:%d]' % (
                        A, A + 15, wf(kh, mat, a), wf(kh, mat, a) + 3, xr(s, kh, b), xr(s, kh, b) + 3, A, A + 15))
                    if di < len(DL):
                        for l in DL[di]: k(l)
                        di += 1
        assert di == len(DL)
    if int(ENV('G1OLD', '0')):
        for s in range(16):
            sb = STG * (s % NB)
            k('s_waitcnt vmcnt(%d)' % (8 * (min(s + D - 1, 15) - s) + (2 if (T1 and s < D) else 0)))
            k('s_barrier')
            if s == 0: ts(5)
            for kh in range(2):
                for mat in range(2):
                    for a in range(2):
                        r = wf(kh, mat, a)
                        off = sb + mat * 8192 + a * 2048 + kh * 1024
                        if off >= 65536:
                            k('ds_read_b128 v[%d:%d], v6 offset:%d' % (r, r + 3, off - 65536))
                        else:
                            k('ds_read_b128 v[%d:%d], v7 offset:%d' % (r, r + 3, off))
            DL = dma(s + D) if s + D < 16 else []
            di = 0
            for _ in range(2):
                if di < len(DL):
                    for l in DL[di]: k(l)
                    di += 1
            for kh in range(2):
                k('s_waitcnt lgkmcnt(%d)' % (4 if kh == 0 else 0))
                for mat in range(2):
                    for a in range(2):
                        for b in range(2):
                            A = acc(mat, a, b)
                            k('v_mfma_f32_32x32x16_bf16 v[%d:%d], v[%d:%d], v[%d:%d], v[%d:%d]' % (
                                A, A + 15, wf(kh, mat, a), wf(kh, mat, a) + 3, xr(s, kh, b), xr(s, kh, b) + 3, A, A + 15))
                            if di < len(DL):
                                for l in DL[di]: k(l)
                                di += 1

    else:
        k('s_waitcnt vmcnt(%d)' % (8 * (D - 1)))
        k('s_barrier')
        ts(5)
        if int(ENV('CLK', '0')): k('s_memtime s[62:63]')
        wreads(0, 0)
        for s in range(16):
            wreads(s, 1)
            k('s_waitcnt lgkmcnt(4)')
            mfmas(s, 0, dma(s + D) if (s + D < 16 and s > 0) else [])
            if s < 15:
                last = min(s + D, 15) if s > 0 else D - 1
                k('s_waitcnt vmcnt(%d) lgkmcnt(0)' % (8 * (last - (s + 1)) + (1 if (G2N and s > 12) else 0)))
                k('s_barrier')
                wreads(s + 1, 0)
            else:
                k('s_waitcnt lgkmcnt(0)')
            if G2N and s == 12:
                mfmas(s, 1, [['global_load_dword v9, v8, s[6:7]%s' % WT], pf_addr()])
            elif G2N and s == 15:
                k('s_barrier')
                chk = '''s_waitcnt vmcnt(0)
                v_cmp_ne_u32 vcc, 1, v9
                s_cbranch_vccnz L_pf_slow
                L_pf_ok:'''.split('\n')
                PFL = pf_list()
                NP0 = int(ENV('NP0', '6'))
                mfmas(s, 1, [[], chk] + PFL[:NP0])
                PFL = PFL[NP0:]
            else:
                mfmas(s, 1, dma(D) if s == 0 else [])
    ts(6)
    if int(ENV('CLK', '0')): k('s_memtime s[64:65]')
    DEFER = int(ENV('DEFER', '0'))
    def g1d_flag():
        k('''
        s_cmp_lg_u32 s14, 0
        s_cbranch_scc1 L_g1d
        s_lshl_b32 s16, s2, 2
        s_add_u32 s16, s16, 0x%x
        v_mov_b32 v8, s16
        v_mov_b32 v9, 1
        global_store_dword v8, v9, s[6:7]%s
        L_g1d:
        ''' % (F2 + 0x80, WT))
    if DEFER == 1: g1d_flag()
    c0 = -2.0 * 1.4426950408889634 * 0.7978845608028654
    c1 = c0 * 0.044715
    k('''
    v_mov_b32 v8, 0x%x
    v_mov_b32 v9, 0x%x
    v_mov_b32 v10, 0x%x
    v_mov_b32 v11, 0x%x
    v_mov_b32 v12, 1.0
    v_mov_b32 v13, 1.0
    s_lshl_b32 s16, s4, 1
    s_and_b32 s17, s3, 1
    s_add_u32 s16, s16, s17
    s_mul_i32 s16, s16, %d
    s_lshl_b32 s17, s5, 3
    s_lshr_b32 s18, s3, 1
    s_lshl_b32 s18, s18, 2
    s_add_u32 s17, s17, s18
    s_lshl_b32 s17, s17, 11
    s_add_u32 s16, s16, s17
    s_add_u32 s16, s16, 0x%x
    v_add_u32 v14, s16, v3
    v_add_u32 v15, 0x1000, v14
    ''' % (f32(c0), f32(c0), f32(c1), f32(c1), 112 * 2048, WS_H))
    def pair(G, U, T, O):
        g, x, e, u = T, T + 2, T + 4, T + 6
        return [
            'v_cvt_pk_bf16_f32 v%d, v%d, v%d' % (x, G, G + 1),
            'v_cvt_pk_bf16_f32 v%d, v%d, v%d' % (u + 1, U, U + 1),
            'v_lshlrev_b32 v%d, 16, v%d' % (g, x),
            'v_and_b32 v%d, 0xffff0000, v%d' % (g + 1, x),
            'v_pk_mul_f32 v[%d:%d], v[%d:%d], v[%d:%d]' % (x, x + 1, g, g + 1, g, g + 1),
            'v_pk_fma_f32 v[%d:%d], v[%d:%d], v[10:11], v[8:9]' % (x, x + 1, x, x + 1),
            'v_pk_mul_f32 v[%d:%d], v[%d:%d], v[%d:%d]' % (x, x + 1, x, x + 1, g, g + 1),
            'v_exp_f32 v%d, v%d' % (e, x),
            'v_exp_f32 v%d, v%d' % (e + 1, x + 1),
            'v_lshlrev_b32 v%d, 16, v%d' % (u, u + 1),
            'v_and_b32 v%d, 0xffff0000, v%d' % (u + 1, u + 1),
            'v_pk_add_f32 v[%d:%d], v[%d:%d], v[12:13]' % (e, e + 1, e, e + 1),
            'v_rcp_f32 v%d, v%d' % (e, e),
            'v_rcp_f32 v%d, v%d' % (e + 1, e + 1),
            'v_pk_mul_f32 v[%d:%d], v[%d:%d], v[%d:%d]' % (x, x + 1, g, g + 1, e, e + 1),
            'v_cvt_pk_bf16_f32 v%d, v%d, v%d' % (e, x, x + 1),
            'v_lshlrev_b32 v%d, 16, v%d' % (x, e),
            'v_and_b32 v%d, 0xffff0000, v%d' % (x + 1, e),
            'v_pk_mul_f32 v[%d:%d], v[%d:%d], v[%d:%d]' % (x, x + 1, x, x + 1, u, u + 1),
            'v_cvt_pk_bf16_f32 v%d, v%d, v%d' % (O, x, x + 1),
        ]
    cnt = 0
    for a in range(2):
        for b in range(2):
            G = acc(0, a, b); U = acc(1, a, b)
            for half in range(2):
                O = 48 + 4 * (cnt & 3)
                cnt += 1
                EL = interleave([pair(G + 8 * half + 2 * p, U + 8 * half + 2 * p, 16 + 8 * p, O + p) for p in range(4)])
                PFS = int(ENV('PFS', '16'))
                for i, l in enumerate(EL):
                    k(l)
                    if G2N and PFL and i % PFS == PFS - 1:
                        for x in PFL.pop(0): k(x)
                k('global_store_dwordx4 v%d, v[%d:%d], s[6:7] offset:%d%s' % (14 + a, O, O + 3, half * 2048 + b * 1024, WT))
    k('''
    s_waitcnt vmcnt(0)
    s_barrier
    s_cmp_lg_u32 s14, 0
    s_cbranch_scc1 L_G2
    s_lshl_b32 s8, s4, 4
    s_add_u32 s8, s8, s5
    s_lshl_b32 s8, s8, 2
    s_add_u32 s8, s8, 0x%x
    v_mov_b32 v3, s8
    v_mov_b32 v4, 1
    global_store_dword v3, v4, s[6:7]%s
    ''' % (FH, WT))
    if G2N: assert not PFL

    if G2N:
        NS = 28
        AC = [160, 176, 224, 240]
        XR, TR = 64, 72
        k('L_G2:')
        ts(7)
        k('''
        s_load_dwordx2 s[4:5], s[0:1], 0
        s_load_dwordx2 s[8:9], s[0:1], 88
        s_mov_b32 s3, s14
        s_lshr_b32 s10, s2, 5
        s_and_b32 s11, s2, 7
        s_lshl_b32 s11, s11, 1
        s_bfe_u32 s12, s2, 0x10003
        s_or_b32 s11, s11, s12
        s_and_b32 s12, s2, 16
        s_or_b32 s11, s11, s12
        s_lshr_b32 s12, s3, 1
        s_and_b32 s13, s3, 1
        v_min_u32 v12, 13, v1
        s_lshr_b32 s17, s11, 1
        s_lshl_b32 s17, s17, 4
        v_add_u32 v12, s17, v12
        v_lshlrev_b32 v12, 2, v12
        v_add_u32 v12, 0x%x, v12
        global_load_dword v14, v12, s[6:7]%s
        s_mul_i32 s14, s3, 28
        s_mul_i32 s15, s11, 112
        s_add_u32 s15, s15, s14
        s_lshl_b32 s15, s15, 11
        s_add_u32 s15, s15, 0x%x
        s_add_u32 s20, s6, s15
        s_addc_u32 s21, s7, 0
        v_lshlrev_b32 v3, 4, v1
        v_add_u32 v4, s29, v3
        v_xor_b32 v5, 0x400, v4
        s_lshl_b32 s17, s13, 10
        v_add_u32 v6, s17, v3
        v_xor_b32 v7, 0x400, v6
        ''' % (FH, WT, WS_H + 4096))
        npf = 0
        if PFR:
            for g in pf_reg() + (pf_lds() if PFR == 2 else []):
                for l in g: k(l)
                npf += 1
        k('''
        v_and_b32 v8, 31, v1
        s_lshl_b32 s17, s11, 6
        s_lshl_b32 s18, s13, 5
        s_add_u32 s17, s17, s18
        v_add_u32 v8, s17, v8
        v_lshrrev_b32 v9, 5, v1
        v_lshlrev_b32 v9, 4, v9
        s_lshl_b32 s17, s10, 6
        s_lshl_b32 s18, s12, 5
        s_add_u32 s17, s17, s18
        v_add_u32 v9, s17, v9
        v_lshlrev_b32 v10, 10, v8
        v_lshl_add_u32 v10, v9, 1, v10
        v_lshlrev_b32 v11, 12, v9
        v_lshl_add_u32 v11, v8, 1, v11
        v_add_u32 v11, 0x%x, v11
        v_add_u32 v8, s28, v4
        v_add_u32 v9, s28, v5
        v_and_b32 v13, 31, v1
        s_lshl_b32 s17, s10, 5
        v_add_u32 v13, s17, v13
        v_lshlrev_b32 v13, 2, v13
        v_add_u32 v13, 0x%x, v13
        s_add_u32 s26, s26, 4096
        s_addc_u32 s27, s27, 0
        s_waitcnt vmcnt(%d) lgkmcnt(0)
        v_cmp_ne_u32 vcc, 1, v14
        s_cbranch_vccz L_G2_poll_ok
        ''' % (WS_AOT, F3, npf))
        poll('G2_poll', 12, 14)
        ts(8)
        class St:
            pass
        def clone(st):
            c = St()
            c.vq = st.vq.clone(); c.pool = list(st.pool); c.H = dict(st.H); c.W = dict(st.W)
            c.todo = list(st.todo); c.hb = st.hb; c.wb = st.wb; c.lq = list(st.lq)
            return c
        st = St()
        st.vq = VQ()
        st.vq.issue(('W', 0), npf)
        st.pool = [16 + 4 * i for i in range(12)] + [128 + 4 * i for i in range(8)] + [192 + 4 * i for i in range(8)]
        st.pool += [64 + 8 * NWR + 4 * i for i in range(16 - 2 * NWR)]
        st.H = {}; st.W = {s: (64 + 8 * s, 68 + 8 * s) for s in range(NWR)}
        st.todo = []
        for s in range(NS):
            if s >= NWR + NWL: st.todo.append(('W', s))
            st.todo.append(('H', s))
        st.hb = 2
        st.wb = NWR + NWL + 2
        st.lq = []
        RES = 2 * int(ENV('G2RES', '0'))
        def issue(st, keep):
            if not st.todo or len(st.pool) < 2 + keep: return None
            kind, s = st.todo.pop(0)
            r = (st.pool.pop(0), st.pool.pop(0))
            L = []
            if kind == 'H':
                if s - st.hb > 1:
                    L += ['s_add_u32 s20, s20, 8192', 's_addc_u32 s21, s21, 0']; st.hb += 4
                st.H[s] = r
                off, sp, va = (s - st.hb) * 2048, 20, 6
            else:
                if s - st.wb > 1:
                    L += ['s_add_u32 s26, s26, 8192', 's_addc_u32 s27, s27, 0']; st.wb += 4
                st.W[s] = r
                off, sp, va = (s - st.wb) * 2048, 26, 4
            G = []
            for j in range(2):
                G.append(L + ['global_load_dwordx4 v[%d:%d], v%d, s[%d:%d] offset:%d' % (r[j], r[j] + 3, va + j, sp, sp + 1, off)])
                L = []
            st.vq.issue((kind, s), 2)
            return G
        while True:
            G = issue(st, 0)
            if G is None: break
            for g in G:
                for l in g: k(l)
        LA = 2
        def lds_read(st, s):
            r = (st.pool.pop(0), st.pool.pop(0))
            st.W[s] = r
            st.lq.append(s)
            return ['ds_read_b128 v[%d:%d], v%d offset:%d' % (r[j], r[j] + 3, 8 + j, (s - NWR) * 2048) for j in range(2)]
        def aot_loads():
            for r in range(16):
                k('global_load_ushort v%d, v11, s[6:7]' % (TR + r))
                if r < 15: k('v_add_u32 v11, 0x1000, v11')
        def step(st, s):
            if s > 0:
                st.pool += list(st.H.pop(s - 1))
                w = st.W.pop(s - 1)
                if s - 1 >= 3: st.pool += list(w)
            ws = []
            n1 = st.vq.wait(('W', s)); n2 = st.vq.wait(('H', s))
            n = n2 if n2 is not None else n1
            if n is not None: ws.append('vmcnt(%d)' % n)
            if s in st.lq:
                i = st.lq.index(s)
                ws.append('lgkmcnt(%d)' % (2 * (len(st.lq) - 1 - i)))
                st.lq = st.lq[i + 1:]
            if ws: k('s_waitcnt ' + ' '.join(ws))
            if int(ENV('G2TS', '0')) and s in (0, 7, 14, 21): ts(1 + (0, 7, 14, 21).index(s))
            keep = RES if (NWR <= s + 1 + LA < NWR + NWL) else 0
            G = []
            if NWR <= s + LA < NWR + NWL: G.append(lds_read(st, s + LA))
            while len(G) < 8:
                g = issue(st, keep)
                if g is None: break
                G += g
            if s == 3:
                G += [['global_load_dwordx4 v[%d:%d], v10, s[4:5]' % (XR, XR + 3)],
                      ['global_load_dwordx4 v[%d:%d], v10, s[4:5] offset:16' % (XR + 4, XR + 7)]]
                st.vq.issue('x', 2)
            per = (len(G) + 3) // 4
            for a in range(2):
                for b in range(2):
                    A = AC[2 * a + b]
                    k('v_mfma_f32_32x32x16_bf16 v[%d:%d], v[%d:%d], v[%d:%d], %s' % (
                        A, A + 15, st.W[s][a], st.W[s][a] + 3, st.H[s][b], st.H[s][b] + 3,
                        '0' if s == 0 else 'v[%d:%d]' % (A, A + 15)))
                    for _ in range(per):
                        if G:
                            for l in G.pop(0): k(l)
            assert not G
        SP, SC = int(ENV('G2SP', '12')), int(ENV('G2SC', '21'))
        for s in range(SC):
            step(st, s)
            if s == SP:
                k('global_load_dword v14, v13, s[6:7]%s' % WT)
                st.vq.issue('f3')
        n = st.vq.wait('f3')
        if n is not None: k('s_waitcnt vmcnt(%d)' % n)
        k('''
        v_cmp_ne_u32 vcc, 1, v14
        s_cbranch_vccnz L_G2_tb
        ''')
        def reduce_w():
            k('''
            s_lshl_b32 s17, s12, 1
            s_or_b32 s17, s17, s13
            ''')
            if int(ENV('G2TS', '0')): ts(5)
            k('s_barrier')
            for sl in range(1, 4):
                k('s_xor_b32 s18, s17, %d' % sl)
                k('s_mul_i32 s18, s18, 12288')
                k('v_add_u32 v%d, s18, v3' % (3 + sl))
                for q in range(4):
                    A = AC[sl] + 4 * q
                    k('ds_write_b128 v%d, v[%d:%d] offset:%d' % (3 + sl, A, A + 3, (sl - 1) * 4096 + 1024 * q))
        sa = clone(st)
        aot_loads(); sa.vq.issue('aot', 16)
        for s in range(SC, NS): step(sa, s)
        reduce_w()
        k('s_branch L_G2_ep')
        k('L_G2_tb:')
        sb_ = clone(st)
        for s in range(SC, NS): step(sb_, s)
        reduce_w()
        poll('G2_p3', 13, 14)
        aot_loads()
        k('L_G2_ep:')
        k('''
        s_mul_i32 s18, s17, 12288
        v_add_u32 v12, s18, v3
        s_waitcnt lgkmcnt(0)
        s_barrier
        ''')
        BUF = 16; AC2 = AC[0]; UT = 96
        if int(ENV('G2TS', '0')): ts(6)
        for sl in range(3):
            for q in range(4):
                R = BUF + 16 * sl + 4 * q
                k('ds_read_b128 v[%d:%d], v12 offset:%d' % (R, R + 3, sl * 4096 + 1024 * q))
        k('s_waitcnt vmcnt(0)')
        for r in range(16):
            k('v_lshlrev_b32 v%d, 16, v%d' % (TR + r, TR + r))
        for i in range(8):
            k('v_lshlrev_b32 v%d, 16, v%d' % (UT + 2 * i, XR + i))
            k('v_and_b32 v%d, 0xffff0000, v%d' % (UT + 1 + 2 * i, XR + i))
        for r in range(16):
            k('v_add_f32 v%d, v%d, v%d' % (TR + r, TR + r, UT + r))
        for i in range(8):
            k('v_cvt_pk_bf16_f32 v%d, v%d, v%d' % (XR + i, TR + 2 * i, TR + 1 + 2 * i))
        for i in range(8):
            k('v_lshlrev_b32 v%d, 16, v%d' % (TR + 2 * i, XR + i))
            k('v_and_b32 v%d, 0xffff0000, v%d' % (TR + 1 + 2 * i, XR + i))
        k('s_waitcnt lgkmcnt(0)')
        for r in range(16):
            k('v_add_f32 v%d, v%d, v%d' % (BUF + r, BUF + r, BUF + 16 + r))
            k('v_add_f32 v%d, v%d, v%d' % (AC2 + r, AC2 + r, BUF + 32 + r))
        for r in range(16):
            k('v_add_f32 v%d, v%d, v%d' % (AC2 + r, AC2 + r, BUF + r))
        for i in range(8):
            k('v_cvt_pk_bf16_f32 v%d, v%d, v%d' % (XR + i, AC2 + 2 * i, AC2 + 2 * i + 1))
        for i in range(8):
            k('v_lshlrev_b32 v%d, 16, v%d' % (AC2 + 2 * i, XR + i))
            k('v_and_b32 v%d, 0xffff0000, v%d' % (AC2 + 2 * i + 1, XR + i))
        for r in range(16):
            k('v_add_f32 v%d, v%d, v%d' % (TR + r, TR + r, AC2 + r))
        for i in range(8):
            k('v_cvt_pk_bf16_f32 v%d, v%d, v%d' % (XR + i, TR + 2 * i, TR + 1 + 2 * i))
        k('''
        global_store_dwordx4 v10, v[%d:%d], s[8:9]
        global_store_dwordx4 v10, v[%d:%d], s[8:9] offset:16
        ''' % (XR, XR + 3, XR + 4, XR + 7))
        tsout()
        k('s_endpgm')
    else:
        P = 8; NS = 28; BUF = 40; AC2 = 168
        k('L_G2:')
        ts(7)
        k('''
        s_load_dwordx2 s[4:5], s[0:1], 0
        s_load_dwordx2 s[8:9], s[0:1], 88
        s_mov_b32 s3, s14
        s_lshr_b32 s10, s2, 5
        s_and_b32 s11, s2, 7
        s_lshl_b32 s11, s11, 1
        s_bfe_u32 s12, s2, 0x10003
        s_or_b32 s11, s11, s12
        s_and_b32 s12, s2, 16
        s_or_b32 s11, s11, s12
        s_lshr_b32 s12, s3, 1
        s_and_b32 s13, s3, 1
        s_mul_i32 s14, s3, 28
        s_mul_i32 s15, s11, 112
        s_add_u32 s15, s15, s14
        s_lshl_b32 s15, s15, 11
        s_add_u32 s15, s15, 0x%x
        s_mul_i32 s16, s10, 112
        s_add_u32 s16, s16, s14
        s_lshl_b32 s16, s16, 11
        s_add_u32 s16, s16, 0x%x
        v_lshlrev_b32 v3, 4, v1
        s_lshl_b32 s17, s12, 10
        s_add_u32 s18, s16, s17
        v_add_u32 v4, s18, v3
        v_xor_b32 v5, 0x400, v4
        s_lshl_b32 s17, s13, 10
        s_add_u32 s18, s15, s17
        v_add_u32 v6, s18, v3
        v_xor_b32 v7, 0x400, v6
        ''' % (WS_H, WS_WDF))
        k('''
        v_and_b32 v8, 31, v1
        s_lshl_b32 s17, s11, 6
        s_lshl_b32 s18, s13, 5
        s_add_u32 s17, s17, s18
        v_add_u32 v8, s17, v8
        v_lshrrev_b32 v9, 5, v1
        v_lshlrev_b32 v9, 4, v9
        s_lshl_b32 s17, s10, 6
        s_lshl_b32 s18, s12, 5
        s_add_u32 s17, s17, s18
        v_add_u32 v9, s17, v9
        v_lshlrev_b32 v10, 10, v8
        v_lshl_add_u32 v10, v9, 1, v10
        v_lshlrev_b32 v11, 12, v9
        v_lshl_add_u32 v11, v8, 1, v11
        v_add_u32 v11, 0x%x, v11
        ''' % WS_AOT)
        k('''
        v_min_u32 v12, 13, v1
        s_lshr_b32 s17, s11, 1
        s_lshl_b32 s17, s17, 4
        v_add_u32 v12, s17, v12
        v_lshlrev_b32 v12, 2, v12
        v_add_u32 v12, 0x%x, v12
        v_add_u32 v13, 16, v1
        v_and_b32 v13, 31, v13
        v_lshlrev_b32 v13, 2, v13
        v_add_u32 v13, 0x%x, v13
        v_cmp_gt_u32 vcc, 16, v1
        v_cndmask_b32 v12, v13, v12, vcc
        v_and_b32 v13, 31, v1
        s_lshl_b32 s17, s10, 5
        v_add_u32 v13, s17, v13
        v_lshlrev_b32 v13, 2, v13
        v_add_u32 v13, 0x%x, v13
        s_waitcnt lgkmcnt(0)
        global_load_dwordx4 v[16:19], v10, s[4:5]
        global_load_dwordx4 v[20:23], v10, s[4:5] offset:16
        ''' % (FH, F2, F3))
        for i in range(64): k('v_mov_b32 v%d, 0' % (AC2 + i))
        poll('G2_poll', 12, 14)
        ts(8)
        vq = VQ()
        def loads(s):
            Bf = BUF + 16 * (s % P)
            off = 2048 * (s & 1)
            L = []
            for j, a in enumerate((4, 5, 6, 7)):
                L.append('global_load_dwordx4 v[%d:%d], v%d, s[6:7] offset:%d' % (Bf + 4 * j, Bf + 4 * j + 3, a, off))
            if s & 1:
                for a in (4, 5, 6, 7): L.append('v_add_u32 v%d, 0x1000, v%d' % (a, a))
            return L
        def emit_loads(vq, s, L):
            pass
        for s in range(P - 1):
            for l in loads(s): k(l)
            vq.issue(('d', s), 4)
        T2 = int(ENV('T2', '0'))
        if T2 & 1:
            k('''
            v_min_u32 v232, 41, v1
            v_lshlrev_b32 v232, 10, v232
            s_lshl_b32 s17, s10, 7
            s_add_u32 s17, s17, s15
            s_add_u32 s17, s17, %d
            v_add_u32 v232, s17, v232
            global_load_dword v235, v232, s[6:7]
            ''' % ((P - 1) * 2048))
            vq.issue('t', 1)
        if T2 & 2:
            k('''
            v_lshlrev_b32 v233, 9, v1
            s_bfe_u32 s17, s2, 0x20003
            s_lshl_b32 s17, s17, 7
            s_add_u32 s17, s17, s16
            s_add_u32 s17, s17, %d
            v_add_u32 v233, s17, v233
            v_min_u32 v234, 19, v1
            v_lshlrev_b32 v234, 9, v234
            v_add_u32 v234, s17, v234
            v_add_u32 v234, 0x8000, v234
            global_load_dword v236, v233, s[6:7]
            global_load_dword v237, v234, s[6:7]
            ''' % ((P - 1) * 2048))
            vq.issue('t', 2)
        def aot_loads():
            for r in range(16):
                k('global_load_ushort v%d, v11, s[6:7]' % (24 + r))
                if r < 15: k('v_add_u32 v11, 0x1000, v11')
        def step(vq, s):
            Bf = BUF + 16 * (s % P)
            wv = vq.wait(('d', s))
            if wv is not None: k('s_waitcnt vmcnt(%d)' % wv)
            L = loads(s + P - 1) if s + P - 1 < NS else []
            li = 0
            for a in range(2):
                for b in range(2):
                    A = AC2 + 16 * (2 * a + b)
                    k('v_mfma_f32_32x32x16_bf16 v[%d:%d], v[%d:%d], v[%d:%d], v[%d:%d]' % (
                        A, A + 15, Bf + 4 * a, Bf + 4 * a + 3, Bf + 8 + 4 * b, Bf + 8 + 4 * b + 3, A, A + 15))
                    for _ in range(2):
                        if li < len(L):
                            k(L[li]); li += 1
            if L: vq.issue(('d', s + P - 1), 4)
        SP, SC = 14, 21
        for s in range(SC):
            step(vq, s)
            if s == SP:
                k('global_load_dword v14, v13, s[6:7]%s' % WT)
                vq.issue('f3')
        k('s_waitcnt vmcnt(%d)' % vq.wait('f3'))
        k('''
        v_cmp_ne_u32 vcc, 1, v14
        s_cbranch_vccnz L_G2_tb
        ''')
        def reduce_w():
            k('''
            s_lshl_b32 s17, s12, 1
            s_or_b32 s17, s17, s13
            ''')
            for sl in range(1, 4):
                k('s_xor_b32 s18, s17, %d' % sl)
                k('s_mul_i32 s18, s18, 12288')
                k('v_add_u32 v%d, s18, v3' % (3 + sl))
                for q in range(4):
                    A = AC2 + 16 * sl + 4 * q
                    k('ds_write_b128 v%d, v[%d:%d] offset:%d' % (3 + sl, A, A + 3, (sl - 1) * 4096 + 1024 * q))
        va = vq.clone()
        aot_loads(); va.issue('aot', 16)
        for s in range(SC, NS): step(va, s)
        reduce_w()
        k('s_branch L_G2_ep')
        k('L_G2_tb:')
        vb = vq.clone()
        for s in range(SC, NS): step(vb, s)
        reduce_w()
        poll('G2_p3', 13, 14)
        aot_loads()
        k('L_G2_ep:')
        k('''
        s_mul_i32 s18, s17, 12288
        v_add_u32 v12, s18, v3
        s_waitcnt lgkmcnt(0)
        s_barrier
        ''')
        for sl in range(3):
            for q in range(4):
                R = BUF + 16 * sl + 4 * q
                k('ds_read_b128 v[%d:%d], v12 offset:%d' % (R, R + 3, sl * 4096 + 1024 * q))
        k('s_waitcnt vmcnt(0)')
        for r in range(16):
            k('v_lshlrev_b32 v%d, 16, v%d' % (24 + r, 24 + r))
        for i in range(8):
            k('v_lshlrev_b32 v%d, 16, v%d' % (96 + 2 * i, 16 + i))
            k('v_and_b32 v%d, 0xffff0000, v%d' % (97 + 2 * i, 16 + i))
        for r in range(16):
            k('v_add_f32 v%d, v%d, v%d' % (24 + r, 24 + r, 96 + r))
        for i in range(8):
            k('v_cvt_pk_bf16_f32 v%d, v%d, v%d' % (16 + i, 24 + 2 * i, 25 + 2 * i))
        for i in range(8):
            k('v_lshlrev_b32 v%d, 16, v%d' % (24 + 2 * i, 16 + i))
            k('v_and_b32 v%d, 0xffff0000, v%d' % (25 + 2 * i, 16 + i))
        k('s_waitcnt lgkmcnt(0)')
        for r in range(16):
            k('v_add_f32 v%d, v%d, v%d' % (BUF + r, BUF + r, BUF + 16 + r))
            k('v_add_f32 v%d, v%d, v%d' % (AC2 + r, AC2 + r, BUF + 32 + r))
        for r in range(16):
            k('v_add_f32 v%d, v%d, v%d' % (AC2 + r, AC2 + r, BUF + r))
        for i in range(8):
            k('v_cvt_pk_bf16_f32 v%d, v%d, v%d' % (16 + i, AC2 + 2 * i, AC2 + 2 * i + 1))
        for i in range(8):
            k('v_lshlrev_b32 v%d, 16, v%d' % (AC2 + 2 * i, 16 + i))
            k('v_and_b32 v%d, 0xffff0000, v%d' % (AC2 + 2 * i + 1, 16 + i))
        for r in range(16):
            k('v_add_f32 v%d, v%d, v%d' % (24 + r, 24 + r, AC2 + r))
        for i in range(8):
            k('v_cvt_pk_bf16_f32 v%d, v%d, v%d' % (16 + i, 24 + 2 * i, 25 + 2 * i))
        k('''
        global_store_dwordx4 v10, v[16:19], s[8:9]
        global_store_dwordx4 v10, v[20:23], s[8:9] offset:16
        ''')
        tsout()
        k('s_endpgm')

    k('''
    L_B:
    s_setprio %d
    s_sub_u32 s8, s2, 256
    s_and_b32 s3, s8, 7
    s_lshl_b32 s3, s3, 5
    s_lshr_b32 s8, s8, 3
    s_add_u32 s3, s3, s8
    s_load_dwordx4 s[8:11], s[0:1], 8
    s_load_dwordx4 s[20:23], s[0:1], 24
    s_load_dwordx4 s[16:19], s[0:1], 40
    v_and_b32 v3, 31, v1
    v_lshl_add_u32 v3, v2, 5, v3
    v_lshlrev_b32 v12, 4, v3
    s_lshl_b32 s24, s3, 8
    v_add_u32 v3, s24, v3
    v_lshlrev_b32 v3, 1, v3
    s_lshl_b32 s24, s3, 2
    v_mov_b32 v4, s24
    s_waitcnt lgkmcnt(0)
    global_load_ushort v5, v3, s[8:9]
    global_load_ushort v6, v3, s[10:11]
    global_load_ushort v7, v3, s[20:21]
    global_load_ushort v8, v3, s[22:23]
    global_load_ushort v9, v4, s[16:17]
    global_load_ushort v140, v3, s[8:9] offset:256
    global_load_ushort v141, v3, s[10:11] offset:256
    global_load_ushort v142, v3, s[20:21] offset:256
    global_load_ushort v143, v3, s[22:23] offset:256
    global_load_ushort v144, v4, s[16:17] offset:2
    global_load_dword v145, v4, s[18:19]
    global_load_dword v120, v121, s[6:7]%s
    ''' % (PRIO_B, WT))
    k('''
    s_mov_b32 s94, 0
    s_cmp_lg_u32 s2, 511
    s_cbranch_scc1 L_B_nc
    s_cmp_lg_u32 s14, 0
    s_cbranch_scc1 L_B_nc
    s_setprio 3
    s_mov_b32 s94, 1
    v_lshlrev_b32 v16, 4, v1
    v_add_u32 v16, 0x%x, v16
    v_mov_b32 v20, 0
    v_mov_b32 v21, 0
    v_mov_b32 v22, 0
    v_mov_b32 v23, 0
    v_add_u32 v182, 0x1000, v16
    global_store_dwordx4 v16, v[20:23], s[6:7]%s
    global_store_dwordx4 v16, v[20:23], s[6:7] offset:1024%s
    global_store_dwordx4 v16, v[20:23], s[6:7] offset:2048%s
    global_store_dwordx4 v16, v[20:23], s[6:7] offset:3072%s
    global_store_dwordx4 v182, v[20:23], s[6:7]%s
    global_store_dwordx4 v182, v[20:23], s[6:7] offset:1024%s
    v_lshlrev_b32 v180, 8, v1
    v_add_u32 v180, 0x%x, v180
    global_load_dword v181, v180, s[6:7]%s
    v_mov_b32 v32, 0x%x
    v_mov_b32 v33, 1
    s_waitcnt vmcnt(0)
    v_add_u32 v181, 1, v181
    global_store_dword v180, v181, s[6:7]%s
    global_store_dword v32, v33, s[6:7]%s
    s_setprio %d
    L_B_nc:
    ''' % (CT, WT, WT, WT, WT, WT, WT, HB, WT, ACK + 4 * 511, WT, WT, PRIO_B))
    def ackloop(nm):
        k('''
        s_cmp_eq_u32 s94, 0
        s_cbranch_scc1 L_%s_ok
        s_mov_b32 s96, 0
        L_%s:
        v_add_u32 v181, 1, v181
        global_store_dword v180, v181, s[6:7]%s
        global_load_dwordx4 v[184:187], v182, s[6:7]%s
        global_load_dwordx4 v[188:191], v182, s[6:7] offset:1024%s
        s_waitcnt vmcnt(0)
        v_and_b32 v184, v184, v185
        v_and_b32 v186, v186, v187
        v_and_b32 v188, v188, v189
        v_and_b32 v190, v190, v191
        v_and_b32 v184, v184, v186
        v_and_b32 v188, v188, v190
        v_and_b32 v184, v184, v188
        v_cmp_ne_u32 vcc, 1, v184
        s_cbranch_vccz L_%s_ok
        s_add_u32 s96, s96, 1
        s_cmp_lt_u32 s96, %d
        s_cbranch_scc1 L_%s
        L_%s_ok:
        ''' % (nm, nm, WT, WT, WT, nm, BOUND, nm, nm))
    nb = [0]
    def beat():
        nb[0] += 1
        k('''
        s_cmp_eq_u32 s94, 0
        s_cbranch_scc1 L_beat%d
        v_add_u32 v181, 1, v181
        global_store_dword v180, v181, s[6:7]%s
        L_beat%d:
        ''' % (nb[0], WT, nb[0]))
    ts(1)
    if int(ENV('NOB', '0')):
        k('''
        s_cmp_lg_u32 s14, 0
        s_cbranch_scc1 L_B_end
        s_cmp_eq_u32 s2, 511
        s_cbranch_scc1 L_nob1
        s_waitcnt vmcnt(0)
        ''')
        handshake('B_hs0')
        k('''
        s_lshl_b32 s8, s2, 2
        s_add_u32 s8, s8, 0x%x
        v_mov_b32 v5, s8
        v_mov_b32 v6, 1
        global_store_dword v5, v6, s[6:7]%s
        L_nob1:
        ''' % (ACK, WT))
        ackloop('co0')
        k('''
        s_lshl_b32 s8, s3, 2
        s_add_u32 s8, s8, 0x%x
        v_mov_b32 v3, s8
        v_mov_b32 v4, 1
        global_store_dword v3, v4, s[6:7]%s
        s_branch L_B_end
        ''' % (F3, WT))
    k('''
    v_and_b32 v11, 15, v1
    v_cvt_f32_u32 v10, v11
    v_cvt_f32_u32 v11, v11
    v_lshrrev_b32 v13, 4, v1
    v_lshlrev_b32 v13, 4, v13
    v_lshl_add_u32 v13, v2, 9, v13
    v_lshlrev_b32 v4, 3, v0
    v_sub_u32 v4, 0x7ff, v4
    ''')
    for e in range(8):
        p = 146 + e
        k('v_subrev_u32 v%d, %d, v4' % (p, e))
        k('v_or_b32 v24, 1, v%d' % p)
        k('v_ffbh_u32 v24, v24')
        k('v_sub_u32 v24, 24, v24')
        k('v_med3_i32 v24, v24, 0, 3')
        k('v_bfe_u32 v25, v%d, v24, 1' % p)
        k('v_bfm_b32 v26, v24, 0')
        k('v_lshl_add_u32 v26, v%d, 1, v26' % p)
        k('v_add_u32 v26, v26, v25')
        k('v_add_u32 v25, 1, v24')
        k('v_lshrrev_b32 v26, v25, v26')
        k('v_lshl_add_u32 v24, v24, 8, v26')
        k('v_lshrrev_b32 v26, 8, v26')
        k('v_lshl_add_u32 v24, v26, 7, v24')
        k('v_lshlrev_b32 v%d, 2, v24' % p)
        if e == 3: beat()
    k('''
    v_lshlrev_b32 v154, 12, v2
    v_lshl_add_u32 v154, v1, 2, v154
    v_lshlrev_b32 v155, 2, v0
    v_bfe_u32 v25, v0, 4, 2
    v_bfe_u32 v26, v0, 2, 2
    v_and_b32 v27, 3, v0
    v_lshlrev_b32 v156, 10, v2
    v_lshl_add_u32 v156, v25, 6, v156
    v_lshl_add_u32 v156, v26, 8, v156
    v_lshl_add_u32 v156, v27, 4, v156
    v_and_b32 v157, 15, v1
    v_lshlrev_b32 v157, 6, v157
    v_lshlrev_b32 v158, 4, v0
    v_min_u32 v159, 254, v0
    v_lshlrev_b32 v159, 4, v159
    s_mov_b32 s95, 0
    s_waitcnt vmcnt(0)
    ''')
    beat()
    KTS = int(ENV('KTS', '0'))
    if KTS: ts(3)
    k('L_kg:')
    for i in range(17): k('v_mov_b32 v%d, 0' % (48 + i))
    k("""
    v_lshlrev_b32 v5, 16, v5
    v_lshlrev_b32 v6, 16, v6
    v_lshlrev_b32 v7, 16, v7
    v_lshlrev_b32 v8, 16, v8
    v_lshlrev_b32 v9, 16, v9
    v_mul_f32 v5, 0x%x, v5
    v_mul_f32 v9, 0x%x, v9
    v_exp_f32 v5, v5
    v_exp_f32 v9, v9
    s_nop 0
    v_cvt_pk_bf16_f32 v5, v5, v9
    v_and_b32 v9, 0xffff0000, v5
    v_lshlrev_b32 v5, 16, v5
    v_mul_f32 v4, v5, v9
    v_mul_f32 v5, v6, v9
    v_mul_f32 v6, v7, v9
    v_mul_f32 v7, v8, v9
    v_mul_f32 v4, 0x%x, v4
    v_mul_f32 v5, 0x%x, v5
    v_mul_f32 v6, 0x46000000, v6
    v_mul_f32 v7, 0x46000000, v7
    ds_write_b128 v12, v[4:7] offset:20480
    s_waitcnt lgkmcnt(0)
    """ % (LOG2E, LOG2E, LOG2E | 0x80000000, INV2PI))
    for g in range(8):
        k('ds_read_b128 v[%d:%d], v13 offset:%d' % (16 + 4 * g, 19 + 4 * g, 20480 + 64 * g))
    X, Y, Pq, T = 76, 78, 80, 82
    def csq(R):
        k('v_pk_mul_f32 v[%d:%d], v[%d:%d], v[%d:%d] op_sel:[0,0] op_sel_hi:[0,1]' % (T, T + 1, R, R + 1, R, R + 1))
        k('v_pk_fma_f32 v[%d:%d], v[%d:%d], v[%d:%d], v[%d:%d] op_sel:[1,1,0] op_sel_hi:[1,0,1] neg_lo:[0,1,0]' % (R, R + 1, R, R + 1, R, R + 1, T, T + 1))
    AS, BS = 84, 100
    for g in range(8):
        Z = 16 + 4 * g
        q = g & 3
        k('s_waitcnt lgkmcnt(%d)' % (7 - g))
        k('v_pk_mul_f32 v[66:67], v[%d:%d], v[10:11]' % (Z, Z + 1))
        k('v_fract_f32 v67, v67')
        k('v_exp_f32 v70, v66')
        k('v_cos_f32 v72, v67')
        k('v_sin_f32 v73, v67')
        k('v_pk_mul_f32 v[%d:%d], v[70:71], v[72:73] op_sel:[0,0] op_sel_hi:[0,1]' % (X, X + 1))
        if int(ENV('DBGX', '0')):
            k('''
            s_nop 4
            v_mul_f32 v68, v%d, v11
            s_nop 4
            v_exp_f32 v69, v68
            ds_read_b128 v[172:175], v13 offset:%d
            s_nop 4
            v_mul_f32 v160, v69, v72
            v_mul_f32 v161, v69, v73
            v_cmp_ne_u32 vcc, v160, v76
            v_cmp_ne_u32 s[40:41], v161, v77
            s_or_b64 vcc, vcc, s[40:41]
            s_waitcnt lgkmcnt(0)
            v_cmp_ne_u32 s[40:41], v172, v%d
            s_or_b64 vcc, vcc, s[40:41]
            s_mov_b32 s42, 0xb0000000
            v_cmp_lt_f32 s[40:41], s42, v%d
            s_or_b64 vcc, vcc, s[40:41]
            s_cbranch_vccz L_dbx%d
            s_lshl_b32 s40, s2, 14
            s_add_u32 s40, s40, 0x3800000
            v_lshlrev_b32 v162, 6, v0
            v_add_u32 v162, s40, v162
            v_mov_b32 v164, %d
            v_mov_b32 v165, v66
            v_mov_b32 v166, v70
            v_mov_b32 v167, v68
            v_mov_b32 v168, v69
            v_mov_b32 v169, v%d
            v_mov_b32 v170, v76
            v_mov_b32 v171, v160
            v_mov_b32 v176, v67
            v_mov_b32 v177, v72
            v_mov_b32 v178, v73
            v_mov_b32 v179, v140
            global_store_dwordx4 v162, v[164:167], s[6:7]
            global_store_dwordx4 v162, v[168:171], s[6:7] offset:16
            global_store_dwordx4 v162, v[172:175], s[6:7] offset:32
            global_store_dwordx4 v162, v[176:179], s[6:7] offset:48
            L_dbx%d:
            ''' % (Z, 20480 + 64 * g, Z, Z, g, 0x1230 + g, Z, g))
        for b in range(4):
            k('v_cvt_pk_f16_f32 v%d, v%d, v%d' % (BS + 4 * b + q, X, X + 1))
            csq(X)
        for b in range(4):
            Pb = Pq
            k('v_pk_mul_f32 v[%d:%d], v[%d:%d], v[%d:%d] op_sel:[0,0] op_sel_hi:[0,1] neg_hi:[1,0]' % (Pb, Pb + 1, Z + 2, Z + 3, X, X + 1))
            k('v_pk_fma_f32 v[%d:%d], v[%d:%d], v[%d:%d], v[%d:%d] op_sel:[1,1,0] op_sel_hi:[1,0,1] neg_lo:[0,1,0] neg_hi:[0,1,0]' % (Pb, Pb + 1, Z + 2, Z + 3, X, X + 1, Pb, Pb + 1))
            csq(X)
            k('v_cvt_pk_f16_f32 v%d, v%d, v%d' % (AS + 4 * b + q, Pb, Pb + 1))
        k('v_fma_f32 v64, v%d, v%d, v64' % (Z + 2, X))
        k('v_fma_f32 v64, -v%d, v%d, v64' % (Z + 3, X + 1))
        beat()
        if g == int(ENV('HSG', '5')): k('global_load_dword v122, v121, s[6:7]%s' % WT)
        if q == 3:
            for b in range(4):
                A = 48 + 4 * b
                k('v_mfma_f32_16x16x32_f16 v[%d:%d], v[%d:%d], v[%d:%d], v[%d:%d]' % (A, A + 3, AS + 4 * b, AS + 4 * b + 3, BS + 4 * b, BS + 4 * b + 3, A, A + 3))
    for r in range(16):
        k('ds_write_b32 v154, v%d offset:%d' % (48 + r, 256 * r))
    k("""
    ds_write_b32 v155, v64 offset:22528
    s_waitcnt lgkmcnt(0)
    s_barrier
    ds_read_b32 v32, v157 offset:%d
    ds_read_b128 v[16:19], v158
    ds_read_b128 v[20:23], v158 offset:4096
    ds_read_b128 v[24:27], v158 offset:8192
    ds_read_b128 v[28:31], v158 offset:12288
    s_waitcnt lgkmcnt(0)
    """ % (22528 + 32))
    for i in range(4):
        k('v_add_f32 v%d, v%d, v%d' % (16 + i, 16 + i, 20 + i))
        k('v_add_f32 v%d, v%d, v%d' % (24 + i, 24 + i, 28 + i))
    for i in range(4):
        k('v_add_f32 v%d, v%d, v%d' % (16 + i, 16 + i, 24 + i))
    src, dst = 32, 33
    for r in (8, 4, 2, 1):
        k('v_add_f32_dpp v%d, v%d, v%d row_ror:%d row_mask:0xf bank_mask:0xf' % (dst, src, src, r))
        src, dst = dst, src
    k("""
    ds_write_b128 v156, v[16:19] offset:16384
    v_mov_b32 v6, 0
    ds_write_b32 v6, v%d offset:%d
    s_waitcnt lgkmcnt(0)
    s_barrier
    """ % (src, 16384 + 4 * (1024 + 128)))
    for e in range(8):
        k('ds_read_b32 v%d, v%d offset:16384' % (32 + e, 146 + e))
    k('s_waitcnt lgkmcnt(0)')
    for m in range(8):
        k('v_mul_f32 v%d, 0x39800000, v%d' % (32 + m, 32 + m))
    for m in range(4):
        k('v_cvt_pk_bf16_f32 v%d, v%d, v%d' % (124 + m, 32 + 2 * m, 33 + 2 * m))
    k('v_add_u32 v3, %d, v158' % EXO)
    k('v_add_u32 v4, %d, v159' % EXO)
    k('ds_write_b128 v3, v[124:127]')
    if KTS:
        k('s_cmp_lg_u32 s95, 0')
        k('s_cbranch_scc1 L_kts4')
        ts(4)
        k('L_kts4:')
    k('''
    s_cmp_lg_u32 s95, 0
    s_cbranch_scc1 L_B_hs_skip
    s_cmp_lg_u32 s14, 0
    s_cbranch_scc1 L_B_hs_skip
    s_cmp_eq_u32 s2, 511
    s_cbranch_scc1 L_B_hs_skip
    s_setprio %d
    s_waitcnt vmcnt(0)
    v_cmp_ne_u32 vcc, v122, v120
    s_cbranch_vccnz L_B_hs_ok
    ''' % PRIO_BV)
    handshake('B_hs')
    k('''
    s_lshl_b32 s8, s2, 2
    s_add_u32 s8, s8, 0x%x
    v_mov_b32 v5, s8
    v_mov_b32 v6, 1
    global_store_dword v5, v6, s[6:7]%s
    s_setprio %d
    L_B_hs_skip:
    s_waitcnt lgkmcnt(0)
    s_barrier
    ds_read_b128 v[128:131], v4 offset:16
    v_cmp_eq_u32 vcc, 255, v0
    s_waitcnt lgkmcnt(0)
    v_cndmask_b32 v128, v128, 0, vcc
    v_cndmask_b32 v129, v129, 0, vcc
    v_cndmask_b32 v130, v130, 0, vcc
    v_cndmask_b32 v131, v131, 0, vcc
    s_cmp_lg_u32 s95, 0
    s_cbranch_scc1 L_kg_done
    ''' % (ACK, WT, PRIO_B))
    if KTS: ts(5)
    for i in range(8): k('v_mov_b32 v%d, v%d' % (132 + i, 124 + i))
    for i in range(5): k('v_mov_b32 v%d, v%d' % (5 + i, 140 + i))
    k('''
    s_mov_b32 s95, 1
    s_branch L_kg
    L_kg_done:
    ''')
    ackloop('co')
    ts(2)
    if int(ENV('DBGK', '0')):
        k('''
        s_mul_i32 s8, s3, 8320
        s_add_u32 s8, s8, 0x400000
        v_add_u32 v3, s8, v158
        v_add_u32 v4, 4160, v3
        global_store_dwordx4 v3, v[132:135], s[6:7]
        global_store_dwordx4 v4, v[124:127], s[6:7]
        s_waitcnt vmcnt(0)
        ''')
    KR = (132, 124)
    k('''
    s_lshl_b32 s9, s3, 13
    s_add_u32 s9, s9, 0x%x
    s_lshl_b32 s10, s3, 4
    s_add_u32 s10, s10, 0x%x
    v_lshlrev_b32 v3, 4, v0
    v_lshlrev_b32 v41, 13, v0
    v_add_u32 v41, s10, v41
    v_add_u32 v42, 0x1000, v41
    v_add_u32 v6, s9, v3
    v_add_u32 v43, 0x1000, v6
    v_mov_b32 v40, v145
    v_lshlrev_b32 v4, 4, v1
    v_add_u32 v4, 0x%x, v4
    v_mov_b32 v44, 0
    v_mov_b32 v45, 0
    v_mov_b32 v46, 0
    v_mov_b32 v47, 0
    v_add_u32 v5, %d, v3
    v_mul_u32_u24 v8, %d, v0
    v_cmp_gt_u32 vcc, 8, v0
    s_and_saveexec_b64 s[12:13], vcc
    ds_write_b128 v8, v[44:47] offset:4096
    ds_write_b128 v8, v[44:47] offset:%d
    s_mov_b64 exec, s[12:13]
    v_cmp_gt_u32 vcc, 32, v0
    s_and_saveexec_b64 s[12:13], vcc
    ds_write_b128 v3, v[44:47] offset:%d
    ds_write_b128 v5, v[44:47] offset:%d
    s_mov_b64 exec, s[12:13]
    ''' % (WS_AOT, WS_XT, F1, AB, CP, AB + 4096, XB, XB))
    k('''
    v_lshrrev_b32 v9, 4, v1
    v_and_b32 v10, 15, v1
    v_lshrrev_b32 v11, 3, v10
    v_and_b32 v12, 7, v10
    v_mul_u32_u24 v12, %d, v12
    v_sub_u32 v13, v9, v11
    v_lshlrev_b32 v13, 4, v13
    v_add_u32 v12, v12, v13
    v_lshlrev_b32 v13, 7, v2
    v_sub_u32 v12, v12, v13
    v_add_u32 v12, %d, v12
    v_lshlrev_b32 v14, 5, v10
    v_lshl_add_u32 v14, v9, 4, v14
    v_sub_u32 v14, v14, v13
    v_add_u32 v14, %d, v14
    v_lshlrev_b32 v15, 6, v10
    v_lshl_add_u32 v15, v9, 4, v15
    v_lshl_add_u32 v15, v2, 13, v15
    v_add_u32 v10, %d, v12
    v_add_u32 v11, %d, v14
    v_lshlrev_b32 v9, 5, v0
    ''' % (CP, 4080 - 32 * 3 - 3584, XB + 512 - 32 * 3, AB, AB))
    for i in range(64): k('v_mov_b32 v%d, 0' % (192 + i))
    for ch in range(2):
        K0 = KR[ch]
        T_ = 48 + 18 * ch
        base = 3 if ch == 0 else 5
        for kk in range(6):
            k('v_alignbit_b32 v%d, v%d, v%d, 16' % (T_ + kk, K0 + 1 + kk, K0 + kk))
            k('v_alignbit_b32 v%d, v%d, v%d, 16' % (T_ + 6 + kk, K0 + 2 + kk, K0 + 1 + kk))
            k('v_mov_b32 v%d, v%d' % (T_ + 12 + kk, K0 + 1 + kk))
        for r in range(8):
            sh = 7 - r
            src = {0: K0, 2: T_ + 12, 4: K0 + 2, 6: T_ + 14, 1: T_, 3: T_ + 6, 5: T_ + 2, 7: T_ + 8}[sh]
            k('ds_write_b128 v%d, v[%d:%d] offset:%d' % (base, src, src + 3, r * CP))
    if not KTS: ts(3)
    k('s_setprio %d' % PRIO_BV)
    poll('B_poll', 4, 16, wide=True)
    if not KTS: ts(4)
    k('''
    global_load_dwordx4 v[24:27], v41, s[6:7]
    global_load_dwordx4 v[36:39], v42, s[6:7]
    s_setprio %d
    s_waitcnt vmcnt(0)
    v_mov_b32 v28, v26
    v_mov_b32 v29, v27
    v_mov_b32 v26, v36
    v_mov_b32 v27, v37
    v_mov_b32 v36, v28
    v_mov_b32 v37, v29
    ds_write_b128 v3, v[24:27] offset:%d
    ds_write_b128 v5, v[36:39] offset:%d
    s_waitcnt lgkmcnt(0)
    s_barrier
    ''' % (PRIO_B2, XB + 512, XB + 512))
    if DEFER:
        k('''
        s_sub_u32 s8, s2, 256
        s_sub_u32 s9, s2, 480
        s_cmp_ge_u32 s8, 224
        s_cselect_b32 s8, s9, s8
        s_lshl_b32 s8, s8, 2
        s_add_u32 s8, s8, 0x%x
        v_mov_b32 v16, s8
        s_setprio %d
        ''' % (F2 + 0x80, PRIO_BV))
        poll('B_def', 16, 17, slp=8)
        k('s_setprio %d' % PRIO_B2)
    if not KTS: ts(5)
    def af(set_, m): return 64 + 64 * set_ + 4 * m
    def bf(set_, dl): return 64 + 64 * set_ + 32 + 4 * dl
    def reads(ch, set_):
        ex = 64 if set_ == 0 else 0
        ra, rb = (12, 14) if ch == 0 else (10, 11)
        for m in range(8):
            k('ds_read_b128 v[%d:%d], v%d offset:%d' % (af(set_, m), af(set_, m) + 3, ra, 512 * (7 - m) + ex))
            k('ds_read_b128 v[%d:%d], v%d offset:%d' % (bf(set_, m), bf(set_, m) + 3, rb, 512 * m + ex))
    def mm(ch, set_):
        for m in range(8):
            for n in range(m, 8):
                A = 192 + 32 * ch + 4 * n
                k('v_mfma_f32_16x16x32_bf16 v[%d:%d], v[%d:%d], v[%d:%d], v[%d:%d]' % (
                    A, A + 3, af(set_, m), af(set_, m) + 3, bf(set_, n - m), bf(set_, n - m) + 3, A, A + 3))
    reads(0, 0)
    k('s_waitcnt lgkmcnt(0)')
    reads(0, 1)
    mm(0, 0)
    k('s_waitcnt lgkmcnt(0)')
    reads(1, 0)
    mm(0, 1)
    k('s_waitcnt lgkmcnt(0)')
    reads(1, 1)
    mm(1, 0)
    k('s_waitcnt lgkmcnt(0)')
    k('s_barrier')
    mm(1, 1)
    ts(6)
    k('v_add_u32 v13, %d, v15' % AB)
    for ch in range(2):
        for n in range(8):
            A = 192 + 32 * ch + 4 * n
            k('ds_write_b128 v%d, v[%d:%d] offset:%d' % (15 if ch == 0 else 13, A, A + 3, 1024 * n))
    k('''
    v_add_u32 v13, %d, v9
    v_and_b32 v41, 0xffff0000, v40
    v_lshlrev_b32 v40, 16, v40
    s_waitcnt lgkmcnt(0)
    s_barrier
    ''' % AB)
    for ch in range(2):
        for w in range(4):
            for hf in range(2):
                r = 64 + 32 * ch + 8 * w + 4 * hf
                k('ds_read_b128 v[%d:%d], v%d offset:%d' % (r, r + 3, 9 if ch == 0 else 13, 8192 * w + 16 * hf))
    ts(7)
    k('s_setprio %d' % PRIO_BV)
    for ch in range(2):
        S = 128 + 16 * ch
        Xr = 24 + 12 * ch
        for i in range(4):
            k('v_lshlrev_b32 v%d, 16, v%d' % (S + 2 * i, Xr + i))
            k('v_and_b32 v%d, 0xffff0000, v%d' % (S + 1 + 2 * i, Xr + i))
        for i in range(8): k('v_mul_f32 v%d, v%d, v%d' % (S + i, S + i, 40 + ch))
        for i in range(4): k('v_cvt_pk_bf16_f32 v%d, v%d, v%d' % (S + 8 + i, S + 2 * i, S + 1 + 2 * i))
        for i in range(4):
            k('v_lshlrev_b32 v%d, 16, v%d' % (S + 2 * i, S + 8 + i))
            k('v_and_b32 v%d, 0xffff0000, v%d' % (S + 1 + 2 * i, S + 8 + i))
    for ch in range(2):
        S = 128 + 16 * ch
        R = 64 + 32 * ch
        k('s_waitcnt lgkmcnt(%d)' % (8 if ch == 0 else 0))
        for i in range(8):
            k('v_add_f32 v%d, v%d, v%d' % (R + i, R + i, R + 8 + i))
            k('v_add_f32 v%d, v%d, v%d' % (R + 16 + i, R + 16 + i, R + 24 + i))
        for i in range(8): k('v_add_f32 v%d, v%d, v%d' % (R + i, R + i, R + 16 + i))
        for i in range(4): k('v_cvt_pk_bf16_f32 v%d, v%d, v%d' % (S + 8 + i, R + 2 * i, R + 1 + 2 * i))
        for i in range(4):
            k('v_lshlrev_b32 v%d, 16, v%d' % (R + 2 * i, S + 8 + i))
            k('v_and_b32 v%d, 0xffff0000, v%d' % (R + 1 + 2 * i, S + 8 + i))
        for i in range(8): k('v_add_f32 v%d, v%d, v%d' % (R + i, R + i, S + i))
        for i in range(4): k('v_cvt_pk_bf16_f32 v%d, v%d, v%d' % (S + 8 + i, R + 2 * i, R + 1 + 2 * i))
        k('global_store_dwordx4 v%d, v[%d:%d], s[6:7]%s' % (6 if ch == 0 else 43, S + 8, S + 11, WT))
    k('''
    s_waitcnt vmcnt(0)
    s_barrier
    s_cmp_lg_u32 s14, 0
    s_cbranch_scc1 L_B_end
    s_lshl_b32 s8, s3, 2
    s_add_u32 s8, s8, 0x%x
    v_mov_b32 v3, s8
    v_mov_b32 v4, 1
    global_store_dword v3, v4, s[6:7]%s
    L_B_end:
    ''' % (F3, WT))
    ts(8)
    tsout()
    k('''
    L_end:
    s_endpgm
    ''')
    return (k, 256, 0, 512, LDS)

if __name__ == '__main__':
    import sys
    HDR = open('parallel_sum__ssm_conv_s4d__glu_gated_geglu__prompt.s.ref').read().split('; Override launch')[0]
    kernels = [build()]
    out = [HDR.rstrip('\n')]
    for (k, v, a, g, lds) in kernels:
        out.append('; @launch kernel=%s grid=(%d,1,1) block=(256,1,1) lds=%d' % (k.name, g, lds))
    out.append('.amdgcn_target "amdgcn-amd-amdhsa--gfx950"')
    out.append('.text')
    for (k, v, a, g, lds) in kernels:
        out.append(kernel_text(k, v))
    out.append('.section .rodata,"a"')
    for (k, v, a, g, lds) in kernels:
        out.append('.p2align 6')
        out.append(kd_text(k.name, v, a))
    dst = sys.argv[1]
    open(dst, 'w').write('\n'.join(out) + '\n')
    print('wrote', dst)
```
